```python
import torch

def _softmax(x, axis=-1):
    return torch.softmax(x, dim=axis)
def _gelu(x):
    return torch.nn.functional.gelu(x, approximate="tanh")
def _silu(x):
    return torch.nn.functional.silu(x)
def _sigmoid(x):
    return torch.sigmoid(x)
def _layernorm(x, axis=-1, eps=1e-5):
    m = x.mean(dim=axis, keepdim=True)
    v = x.var(dim=axis, keepdim=True, unbiased=False)
    return (x - m) / torch.sqrt(v + eps)
def _scatter_add(tgt, idx, src, axis=0):
    return tgt.clone().index_add_(axis, idx, src)
def _segment_sum(src, seg, n):
    out = torch.zeros((n,) + src.shape[1:], dtype=src.dtype)
    return out.index_add_(0, seg, src)
def _pad(x, pw):
    flat = tuple(v for pair in reversed(pw) for v in pair)
    return torch.nn.functional.pad(x, flat)

kernel_name = 'recurrent_scan__spectral_gfnet__glu_gated_geglu__prompt'

def setup_inputs():

    _w = (lambda a: (lambda t: t.to(torch.bfloat16) if t.is_floating_point() else t)(torch.as_tensor(a)))
    def _A_setup():
        B, S, D = 1, 2048, 640
        Df = D // 2 + 1
        return {
            "x": _w((lambda *s: torch.randn(*s, dtype=torch.bfloat16) * 0.1)(B, S, D)),
            "w_r": _w((lambda *s: torch.randn(*s, dtype=torch.bfloat16) * 3.2)(S, Df) * 0.02),
            "w_i": _w((lambda *s: torch.randn(*s, dtype=torch.bfloat16) * 3.2)(S, Df) * 0.02),
        }
    _A_in = _A_setup()

    def _B_setup():
        B, S, Dm, Df = 1, 2048, 640, 1536
        return {
            "x": _w((lambda *s: torch.randn(*s, dtype=torch.bfloat16) * 0.1)(B, S, Dm)),
            "w_gate": _w((lambda *s: torch.randn(*s, dtype=torch.bfloat16) * 0.8)(Dm, Df) * (Dm ** -0.5)),
            "w_up": _w((lambda *s: torch.randn(*s, dtype=torch.bfloat16) * 0.8)(Dm, Df) * (Dm ** -0.5)),
            "w_down": _w((lambda *s: torch.randn(*s, dtype=torch.bfloat16) * 0.8)(Df, Dm) * (Df ** -0.5)),
        }
    _B_in = _B_setup()

    return {
        "A_x": _A_in["x"],
        "A_w_r": _A_in["w_r"],
        "A_w_i": _A_in["w_i"],
        "B_x": _B_in["x"],
        "B_w_gate": _B_in["w_gate"],
        "B_w_up": _B_in["w_up"],
        "B_w_down": _B_in["w_down"],
    }

def reference(A_x, A_w_r, A_w_i, B_x, B_w_gate, B_w_up, B_w_down):
    def _A_ref(x, w_r, w_i):
        B, S, D = x.shape
        X = (lambda x, axes=(-2,-1): torch.fft.rfft2(x.float(), dim=axes))(x, axes=(-2, -1))
        W = w_r + 1j * w_i
        X = X * W
        y = (lambda x, s, axes=(-2,-1): torch.fft.irfft2(x, s=s, dim=axes).to(torch.bfloat16))(X, (S, D), axes=(-2, -1))
        return y

    def _B_ref(x, w_gate, w_up, w_down):
        g = torch.einsum("bsd,df->bsf", x, w_gate)
        u = torch.einsum("bsd,df->bsf", x, w_up)
        h = _gelu(g) * u
        return torch.einsum("bsf,fd->bsd", h, w_down)

    x = A_x
    xn = _layernorm(x, axis=-1)
    s = _A_ref(xn, A_w_r, A_w_i)
    g = _silu(_B_ref(xn, B_w_gate, B_w_up, B_w_down))
    return x + s * g
```

```python
import re

def v(i, n=1):
    return f'v{i}' if n == 1 else f'v[{i}:{i+n-1}]'
def a(i, n=1):
    return f'a{i}' if n == 1 else f'a[{i}:{i+n-1}]'
def s(i, n=1):
    return f's{i}' if n == 1 else f's[{i}:{i+n-1}]'

def f2u(x):
    import struct
    return struct.unpack('<I', struct.pack('<f', x))[0]
def fhex(x):
    return '0x%08x' % f2u(x)

class Asm:
    def __init__(self):
        self.blocks = []
        self.cur = None
        self.block('_start%d' % id(self), label=False)
    def block(self, name, label=True):
        self.cur = []
        self.blocks.append((name, self.cur))
        if label:
            self.cur.append(name + ':')
    def __call__(self, txt):
        for l in txt.split('\n'):
            l = l.strip()
            if l:
                self.cur.append(l)
    def extend(self, lines):
        for l in lines:
            self(l)
    def text(self):
        out = []
        for n, ls in self.blocks:
            for l in ls:
                out.append(l if l.endswith(':') or l.startswith('.') else '    ' + l)
        return '\n'.join(out) + '\n'
    def get(self, name):
        for n, ls in self.blocks:
            if n == name:
                return ls
        raise KeyError(name)
    def check(self, path=None, verbose=True):
        lines = []
        if path is None:
            for n, ls in self.blocks: lines += ls
        else:
            for n in path: lines += self.get(n)
        return check_lines(lines, verbose)

def interleave(main, fill, start=0, per=None, weights=None):
    out = []
    n = len(main) - start
    k = 0
    for i, m in enumerate(main):
        out.append(m)
        if i < start:
            continue
        j = i - start + 1
        upto = (len(fill) * j + n - 1) // n if per is None else min(len(fill), per * j)
        while k < upto:
            f = fill[k]; k += 1
            if isinstance(f, (list, tuple)): out.extend(f)
            else: out.append(f)
    while k < len(fill):
        f = fill[k]; k += 1
        if isinstance(f, (list, tuple)): out.extend(f)
        else: out.append(f)
    return out

_REG = re.compile(r'^-?\|?(abs\()?([vas])(\d+)\)?\|?$')
_RNG = re.compile(r'^-?\|?(abs\()?([vas])\[(\d+):(\d+)\]\)?\|?$')
def regs(op):
    op = op.strip()
    m = _REG.match(op)
    if m: return [(m.group(2), int(m.group(3)))]
    m = _RNG.match(op)
    if m: return [(m.group(2), i) for i in range(int(m.group(3)), int(m.group(4)) + 1)]
    if op == 'vcc': return [('s', 'vcc')]
    if op == 'm0': return [('s', 'm0')]
    if op == 'exec': return [('s', 'exec')]
    return []

TRANS = ('v_exp_f32', 'v_log_f32', 'v_rcp_f32', 'v_rsq_f32', 'v_sqrt_f32', 'v_sin_f32', 'v_cos_f32', 'v_rcp_iflag_f32')
RMW = ('v_fmac_', 'v_dot2c_', 'v_pk_fmac', 'v_writelane', 'v_mac_')

class I:
    pass

def parse(line):
    line = line.split(';')[0].strip()
    if not line or line.endswith(':') or line.startswith('.'):
        return None
    parts = line.split(None, 1)
    mn = parts[0]
    ops = []
    mods = ''
    if len(parts) > 1:
        raw = [x.strip() for x in re.split(r',(?![^\[]*\])', parts[1])]
        last = raw[-1].split()
        if last:
            raw[-1] = last[0]; mods = ' '.join(last[1:])
        ops = raw
    i = I(); i.mn = mn; i.ops = ops; i.mods = mods; i.line = line
    i.dst = []; i.src = []; i.cls = None; i.ws = 1
    R = lambda xs: [r for x in xs for r in regs(x)]
    if mn == 's_nop':
        i.cls = 'nop'; i.ws = int(ops[0], 0) + 1
    elif mn in ('s_waitcnt', 's_barrier', 's_sleep', 's_setprio', 's_endpgm') or mn.startswith('s_cbranch') or mn == 's_branch':
        i.cls = 'ctl'
    elif mn.startswith('s_load') or mn.startswith('s_buffer_load') or mn in ('s_memtime', 's_memrealtime'):
        i.cls = 'smem'; i.dst = R(ops[:1]); i.src = R(ops[1:])
    elif mn.startswith('s_cmp') or mn.startswith('s_bitcmp'):
        i.cls = 'salu'; i.src = R(ops)
    elif mn.startswith('s_'):
        i.cls = 'salu'; i.dst = R(ops[:1]); i.src = R(ops[1:])
        if 'saveexec' in mn: i.dst += [('s', 'exec')]
    elif mn.startswith('v_mfma'):
        i.cls = 'mfma'; i.dst = R(ops[:1]); i.A = R(ops[1:2]); i.B = R(ops[2:3]); i.C = R(ops[3:4]); i.src = i.A + i.B + i.C
        i.passes = 8 if '32x32x16' in mn else 4 if '16x16x32' in mn else None
        assert i.passes, line
    elif mn.startswith('v_'):
        i.cls = 'valu'
        nd = 1
        if mn.startswith('v_add_co') or mn.startswith('v_addc_co') or mn.startswith('v_sub_co') or mn.startswith('v_mad_u64'):
            nd = 2
        i.dst = R(ops[:nd]); i.src = R(ops[nd:])
        if any(mn.startswith(p) for p in RMW): i.src += i.dst
        if 'permlane' in mn: i.dst = R(ops[:2]); i.src = R(ops[:2])
        if mn.startswith('v_cndmask') and len(ops) == 3: i.src += [('s', 'vcc')]
        if mn.startswith('v_cmpx'): i.dst += [('s', 'exec')]
        i.trans = any(mn.startswith(t) for t in TRANS)
        i.dpp = ('row_' in mods or 'quad_perm' in mods or 'wave_' in mods or mn.endswith('_dpp'))
        if i.dpp and ('bound_ctrl' not in mods): i.src += i.dst
        if 'sdwa' in mn and 'UNUSED_PRESERVE' in mods: i.src += i.dst
    elif mn.startswith('ds_'):
        i.cls = 'ds'
        if mn.startswith('ds_read') or mn.startswith('ds_bpermute') or mn.startswith('ds_swizzle') or '_rtn' in mn:
            i.dst = R(ops[:1]); i.src = R(ops[1:])
            if 'd16' in mn: i.src += i.dst
        else:
            i.src = R(ops)
    elif mn.startswith('buffer_') or mn.startswith('global_'):
        i.cls = 'vmem'; i.store_data = []
        lds = (' lds' in ' ' + mods) or 'load_lds' in mn
        if mn in ('buffer_wbl2', 'buffer_inv'):
            pass
        elif lds:
            i.src = R(ops) + [('s', 'm0')]; i.ldsdma = True
        elif 'load' in mn:
            i.dst = R(ops[:1]); i.src = R(ops[1:])
            if 'd16' in mn: i.src += i.dst
        elif 'atomic' in mn:
            i.src = R(ops)
            if 'sc0' in mods: i.dst = R(ops[:1])
        else:
            i.src = R(ops)
            data = ops[0] if mn.startswith('buffer_') else ops[1]
            if 'x3' in mn or 'x4' in mn: i.store_data = regs(data)
    else:
        raise ValueError('unknown instr: ' + line)
    return i

def check_lines(lines, verbose=True):
    errs = []
    hist = []
    pos = 0
    vm = []; lg = []
    smem_pending = False
    for ln in lines:
        i = parse(ln)
        if i is None: continue
        def err(msg): errs.append(f'{msg}: "{i.line}"')
        touched = set(i.src) | set(i.dst)
        if i.mn == 's_waitcnt':
            txt = i.line
            m = re.search(r'vmcnt\((\d+)\)', txt)
            if m:
                n = int(m.group(1))
                while len(vm) > n: vm.pop(0)
            m = re.search(r'lgkmcnt\((\d+)\)', txt)
            if m:
                n = int(m.group(1))
                if any(x.cls == 'smem' for x in lg) and n > 0:
                    pass
                else:
                    while len(lg) > n: lg.pop(0)
        else:
            for q, nm in ((vm, 'vmcnt'), (lg, 'lgkmcnt')):
                for p in q:
                    bad = set(p.dst) & touched
                    if bad and not (i.cls == p.cls and 'd16' in i.mn):
                        err(f'missing {nm} wait on {sorted(bad)[:3]} (from {p.line})')
        for (p, ppos) in reversed(hist):
            d = pos - ppos - 1 + 0
            if d > 20: break
            pd = set(p.dst)
            need = 0
            if p.cls == 'mfma':
                x = 12 if p.passes == 8 else 8
                if i.cls == 'mfma':
                    if pd & (set(i.A) | set(i.B)): need = x
                    elif pd & set(i.C):
                        if not (p.dst == i.C and p.passes == i.passes): need = x - 2
                    elif pd & set(i.dst): need = x - 2
                elif i.cls in ('valu', 'vmem', 'ds'):
                    if pd & touched: need = x
                    if i.cls == 'valu' and set(p.C) & set(i.dst): need = max(need, 7 if p.passes == 8 else 3)
            if p.cls == 'valu':
                vd = {r for r in pd if r[0] in 'va'}
                sd = {r for r in pd if r[0] == 's'}
                if i.cls == 'mfma' and vd & set(i.src): need = max(need, 2)
                if i.cls == 'valu':
                    if p.trans and not i.trans and vd & set(i.src): need = max(need, 1)
                    if i.dpp and vd & set(i.src): need = max(need, 2)
                    if 'permlane' in i.mn and vd & set(i.src): need = max(need, 2)
                    if ('readlane' in i.mn or 'readfirstlane' in i.mn) and vd & set(i.src): need = max(need, 1)
                    if sd & set(i.src): need = max(need, 4 if 'lane' in i.mn else 2)
                    if ('s', 'exec') in sd and i.dpp: need = max(need, 5)
                    if ('op_sel' in p.mods and not p.mn.startswith('v_pk') or 'sdwa' in p.mn) and vd & touched: need = max(need, 1)
                if i.cls == 'vmem' and sd & set(i.src): need = max(need, 5)
                if i.cls == 'mfma' and ('s', 'exec') in sd: need = max(need, 4)
            if p.cls == 'salu' and ('s', 'm0') in pd and i.cls == 'vmem' and getattr(i, 'ldsdma', False): need = max(need, 1)
            if p.cls == 'vmem' and p.store_data and set(p.store_data) & set(i.dst): need = max(need, 2 if i.cls == 'valu' else 1)
            if d < need:
                err(f'needs {need} wait states after "{p.line}", has {d}')
        if i.cls == 'vmem' and i.mn not in ():
            vm.append(i)
            if len(vm) > 63: err('vmcnt overflow')
        if i.cls in ('ds', 'smem'):
            lg.append(i)
        hist.append((i, pos + i.ws - 1))
        if len(hist) > 40: hist.pop(0)
        pos += i.ws
    if verbose:
        for e in errs[:40]: print('HAZARD', e)
        if errs: print(len(errs), 'hazard(s)')
    return errs

def khead(name):
    return f'.text\n.globl {name}\n.p2align 8\n.type {name},@function\n{name}:\n'

def kdesc(name, vgpr, sgpr=102, accum=None):
    if accum is None:
        accum = min(256, (vgpr + 3) // 4 * 4)
    return f'''.section .rodata,"a"
.p2align 6
.amdhsa_kernel {name}
  .amdhsa_next_free_vgpr {vgpr}
  .amdhsa_next_free_sgpr {sgpr}
  .amdhsa_accum_offset {accum}
  .amdhsa_group_segment_fixed_size 0
  .amdhsa_kernarg_size 80
  .amdhsa_user_sgpr_count 2
  .amdhsa_user_sgpr_kernarg_segment_ptr 1
  .amdhsa_system_sgpr_workgroup_id_x 1
.end_amdhsa_kernel
.text
'''

class VM:
    def __init__(self): self.q = []
    def issue(self, tag): self.q.append(tag)
    def count(self, *tags):
        last = -1
        for i, t in enumerate(self.q):
            if t in tags: last = i
        n = len(self.q) - 1 - last
        self.q = self.q[last + 1:]
        assert n <= 63
        return n
```

```python
from asmlib import *
from layout import *

def entry(A):
    A('''s_load_dwordx16 s[40:55], s[0:1], 0
         s_load_dwordx4 s[56:59], s[0:1], 64
         v_lshrrev_b32 v1, 6, v0
         v_and_b32 v0, 63, v0
         v_readfirstlane_b32 s16, v1''')

NSTAMP = 8
def stamp(A, i, on):
    if on: A(f's_memtime s[{64+2*i}:{65+2*i}]')
def stamp_rt(A, i, on):
    if on: A(f's_memrealtime s[{64+2*i}:{65+2*i}]')
def stamp_flush(A, on, kidx=0):
    if not on: return
    A(f'''s_waitcnt lgkmcnt(0)
          s_lshl_b32 s60, s2, 3
          s_add_u32 s60, s60, s16
          s_lshl_b32 s60, s60, 5
          s_add_u32 s60, s60, {WS_DBG + kidx * 65536 * 2}
          s_add_u32 s62, s58, s60
          s_addc_u32 s63, s59, 0
          v_mov_b32 v1, 0''')
    for i in range(NSTAMP):
        A(f'v_mov_b32 v2, s{64+2*i}\nglobal_store_dword v1, v2, s[62:63] offset:{4*i}')
```

```python
from asmlib import *
from layout import *
import math
MF32 = 'v_mfma_f32_32x32x16_bf16'
MF16 = 'v_mfma_f32_16x16x32_bf16'
L_X, L_A, L_WD, L_CS = 0, 40960, 81920, 122880
S_F = 17
SX, SWS, SWR, SWI, SWD, SCS = 4, 12, 8, 20, 24, 32
WTL = 200
CSL = 160
ACC = 64
ROW = (128, 136); BF = (144, 148); AFR = (40, 48)

def issue(A, vm):
    A(f'''s_mov_b32 s4, s40\ns_mov_b32 s5, s41\ns_mov_b32 s6, {S*D*2}\ns_mov_b32 s7, 0x20000
          s_mul_i32 s28, s16, {4*81920}
          s_mul_i32 s29, s17, 1280
          s_add_u32 s28, s28, s29
          s_mul_i32 s29, s16, 5120
          s_mov_b32 s30, 80640''')
    for n in range(5):
        A(f'''v_add_u32 v1, {64*n}, v0
              v_mul_u32_u24 v2, 205, v1
              v_lshrrev_b32 v2, 14, v2
              v_lshlrev_b32 v1, 4, v1
              s_add_u32 m0, s29, {L_X + 1024*n}
              v_mad_u32_u24 v1, v2, s30, v1
              buffer_load_dwordx4 v1, s[4:7], s28 offen lds''')
        vm.issue('x')
    A(f'''s_mov_b32 s12, s58\ns_mov_b32 s13, s59\ns_mov_b32 s14, {WS_SIZE}\ns_mov_b32 s15, 0x20000
          s_mov_b32 s8, s42\ns_mov_b32 s9, s43\ns_mov_b32 s10, {S*321*2}\ns_mov_b32 s11, 0x20000
          s_mov_b32 s20, s44\ns_mov_b32 s21, s45\ns_mov_b32 s22, {S*321*2}\ns_mov_b32 s23, 0x20000
          s_mov_b32 s24, s52\ns_mov_b32 s25, s53\ns_mov_b32 s27, 0x20000
          s_cmp_lt_u32 s17, 48
          s_cselect_b32 s26, {F*D*2}, 0
          s_cmp_ge_u32 s17, 40
          s_cselect_b32 s32, s50, s48
          s_cselect_b32 s33, s51, s49
          s_cselect_b32 s19, 40, 16
          s_cmp_ge_u32 s17, 16
          s_cselect_b32 s34, {D*F*2}, 0
          s_mov_b32 s35, 0x20000
          s_sub_u32 s19, s17, s19
          s_and_b32 s19, s19, 31''')
    A(f'''v_lshrrev_b32 v1, 3, v0
          v_mul_u32_u24 v1, 3072, v1
          v_and_b32 v2, 7, v0
          v_lshl_add_u32 v1, v2, 4, v1
          s_mul_i32 s28, s16, {80*3072}
          s_lshl_b32 s29, s19, 7
          s_add_u32 s28, s28, s29''')
    for n in range(10):
        A(f'buffer_load_dwordx4 {v(CSL + 4*n, 4)}, v1, {s(SCS,4)}, s28 offen\ns_add_u32 s28, s28, {8*3072}')
        vm.issue('cs')
    A(f'''v_lshlrev_b32 v1, 4, v0
          s_mul_i32 s28, s17, 40960
          s_mul_i32 s29, s16, 5120
          s_add_u32 s28, s28, s29''')
    for n in range(5):
        A(f's_add_u32 m0, s29, {L_WD + 1024*n}\ns_add_u32 s30, s28, {1024*n}\nbuffer_load_dwordx4 v1, {s(SWD,4)}, s30 offen lds')
        vm.issue('wd')
    A(f'''s_sub_u32 s18, 7, s16
          v_bfe_u32 v1, v0, 2, 2
          s_and_b32 s28, s17, 7
          s_lshl_b32 s28, s28, 2
          v_add_u32 v1, s28, v1               ; j1
          v_and_b32 v2, 3, v0
          s_lshr_b32 s28, s17, 3
          s_lshl_b32 s28, s28, 1
          s_and_b32 s29, s18, 1
          s_add_u32 s28, s28, s29
          s_lshl_b32 s28, s28, 2
          v_add_u32 v2, s28, v2               ; j2
          v_lshl_add_u32 v1, v2, 5, v1
          v_mul_u32_u24 v1, 642, v1
          v_lshrrev_b32 v2, 4, v0
          v_lshl_add_u32 v3, v2, 4, v1
          s_lshr_b32 s28, s18, 1
          s_lshl_b32 s28, s28, 6''')
    for r in range(2):
        A(f'buffer_load_dwordx4 {v(WTL + 8*r, 4)}, v3, {s(SWR,4)}, s28 offen offset:{256*r}'); vm.issue('wt')
        A(f'buffer_load_dwordx4 {v(WTL + 8*r + 4, 4)}, v3, {s(SWI,4)}, s28 offen offset:{256*r}'); vm.issue('wt')
    for q in range(8): A(f'v_mov_b32 {v(WTL + 16 + q)}, 0')
    A(f'''s_cmp_ge_u32 s18, 4
          s_cbranch_scc1 f1_wt320
          buffer_load_dwordx4 {v(WTL + 16, 4)}, v3, {s(SWR,4)}, s28 offen offset:512
          buffer_load_dwordx4 {v(WTL + 20, 4)}, v3, {s(SWI,4)}, s28 offen offset:512
          s_branch f1_wtdone
          f1_wt320:
          v_lshl_or_b32 v1, v2, 28, v1
          buffer_load_ushort {v(WTL + 16)}, v1, {s(SWR,4)}, 0 offen offset:640
          buffer_load_ushort {v(WTL + 20)}, v1, {s(SWI,4)}, 0 offen offset:640
          f1_wtdone:''')
    vm.issue('wt'); vm.issue('wt')

def layernorm(A, vm, sc=''):
    X, T = 64, 88
    A(f'''v_lshrrev_b32 v1, 4, v0
          v_mul_u32_u24 v1, 1280, v1
          v_and_b32 v2, 15, v0
          v_mul_u32_u24 v3, 80, v2
          s_mul_i32 s29, s16, 5120
          v_add3_u32 v1, v1, v3, s29
          s_mov_b32 s28, 0x3f803f80
          v_mov_b32 v4, 0\nv_mov_b32 v5, 0\nv_mov_b32 v6, 0\nv_mov_b32 v7, 0
          s_waitcnt vmcnt({vm.count("x")})''')
    for c in range(5): A(f'ds_read_b128 {v(X + 4*c, 4)}, v1 offset:{L_X + 16*c}')
    A(f'''v_lshrrev_b32 v3, 3, v2
          v_mul_u32_u24 v3, 20480, v3
          v_bfe_u32 v8, v0, 2, 1
          v_lshl_add_u32 v3, v8, 9, v3
          v_lshrrev_b32 v8, 4, v0
          s_lshl_b32 s29, s16, 2
          v_add_u32 v8, s29, v8               ; s1
          v_lshl_add_u32 v3, v8, 4, v3
          v_and_b32 v9, 3, v0
          v_lshl_add_u32 v3, v9, 2, v3
          v_add_u32 v3, {L_A}, v3''')
    for c in range(5):
        A(f's_waitcnt lgkmcnt({4 - c})')
        for q in range(4):
            r = X + 4 * c + q
            A(f'v_dot2_f32_bf16 {v(4 + (q & 1))}, {v(r)}, s28, {v(4 + (q & 1))}')
            A(f'v_dot2_f32_bf16 {v(6 + (q & 1))}, {v(r)}, {v(r)}, {v(6 + (q & 1))}')
    for c in range(20):
        A(f'v_lshlrev_b32 {v(T + 2*c)}, 16, {v(X + c)}\nv_and_b32 {v(T + 2*c + 1)}, 0xffff0000, {v(X + c)}')
    A('v_add_f32 v4, v4, v5\nv_add_f32 v6, v6, v7\ns_nop 0')
    for n in (8, 4, 2, 1):
        A(f'v_add_f32_dpp v4, v4, v4 row_ror:{n} row_mask:0xf bank_mask:0xf\nv_add_f32_dpp v6, v6, v6 row_ror:{n} row_mask:0xf bank_mask:0xf\ns_nop 0')
    A(f'''s_mov_b32 s28, {fhex(1.0/640)}
          v_mul_f32 v4, s28, v4               ; mean
          v_mul_f32 v6, s28, v6
          v_fma_f32 v6, -v4, v4, v6
          v_max_f32 v6, 0, v6                 ; variance
          v_cvt_pk_bf16_f32 v5, v4, v6
          v_and_b32 v6, 0xffff0000, v5
          v_add_f32 v6, {fhex(1e-5)}, v6
          v_cvt_pk_bf16_f32 v6, v6, v6
          v_lshlrev_b32 v6, 16, v6
          v_sqrt_f32 v6, v6
          v_lshlrev_b32 v4, 16, v5
          v_cvt_pk_bf16_f32 v6, v6, v6
          v_lshlrev_b32 v6, 16, v6
          v_rcp_f32 v11, v6
          v_cvt_pk_bf16_f32 v10, -v4, -v4
          v_mul_f32 v6, v4, v11
          v_mov_b32 v4, v11''')
    A(f'''v_and_b32 v9, 3, v8
          v_bfe_u32 v12, v8, 2, 1
          v_lshl_add_u32 v9, v12, 3, v9
          v_bfe_u32 v12, v8, 3, 1
          v_lshl_add_u32 v9, v12, 2, v9
          v_lshrrev_b32 v12, 4, v8
          v_lshl_add_u32 v9, v12, 5, v9
          v_lshlrev_b32 v9, 3, v9
          v_lshl_or_b32 v9, v2, 28, v9
          s_lshr_b32 s28, s17, 1
          s_lshl_b32 s28, s28, 6
          s_and_b32 s29, s17, 1
          s_lshl_b32 s29, s29, 4
          s_add_u32 s28, s28, s29
          s_lshl_b32 s28, s28, 3
          s_add_u32 s28, s28, {WS_ST}
          buffer_store_dwordx2 v[10:11], v9, {s(SWS,4)}, s28 offen{sc}''')
    vm.issue('st')
    for c in range(20):
        A(f'v_pk_fma_f32 {v(T + 2*c, 2)}, {v(T + 2*c, 2)}, v[4:5], v[6:7] op_sel_hi:[1,0,0] neg_lo:[0,0,1] neg_hi:[0,0,1]')
    for j in range(20):
        A(f'v_cvt_pk_bf16_f32 {v(X + j)}, {v(T + j)}, {v(T + 20 + j)}')
        A(f'ds_write_b32 v3, {v(X + j)} offset:{1024*j}')
    A('s_waitcnt lgkmcnt(0)\ns_barrier')

def dft(A, vm, sc=''):
    K, PH, AMP, K1, K20, T0, T1, H, VA = 4, 5, 6, 7, 8, 9, 10, 11, 12
    AL, BE, GA, SG = 13, 14, 15, 16
    A1, A2 = 18, 20
    A(f'''s_mov_b32 s36, s16
          v_lshlrev_b32 {v(VA)}, 4, v0
          v_add_u32 {v(VA)}, {L_A}, {v(VA)}
          s_mov_b32 s37, {fhex(1.0/640)}''')
    A.block('f1_unit')
    def aread(buf, j):
        return [f'ds_read_b128 {v(AFR[buf] + 4*q, 4)}, {v(VA)} offset:{20480*q + 1024*j}' for q in range(2)]
    A.extend(aread(0, 0))
    A(f'''s_lshr_b32 s28, s36, 1
          s_lshl_b32 s28, s28, 5              ; 32 kt
          s_and_b32 s29, s36, 1               ; cs
          s_mul_i32 s30, s29, 0x3e800000
          v_and_b32 {v(T0)}, 31, v0
          v_add_u32 {v(T0)}, s28, {v(T0)}
          v_cvt_f32_u32 {v(K)}, {v(T0)}
          v_and_b32 {v(T1)}, 1, v0
          v_lshlrev_b32 {v(T1)}, 31, {v(T1)}
          v_xor_b32 {v(SG)}, 1.0, {v(T1)}
          s_lshl_b32 s31, s29, 31
          s_xor_b32 s31, s31, 1.0             ; sigma
          v_cmp_gt_u32 vcc, s29, {v(T0)}
          v_mov_b32 {v(PH)}, s30
          v_mov_b32 {v(AMP)}, 1.0
          v_mov_b32 {v(AL)}, 1.0
          v_mov_b32 {v(BE)}, s31
          v_xor_b32 {v(GA)}, 0x80000000, {v(BE)}
          v_mov_b32 {v(T1)}, {fhex(160.0)}
          v_cndmask_b32 {v(K)}, {v(K)}, {v(T1)}, vcc
          v_mov_b32 {v(T1)}, {fhex(0.125)}
          v_cndmask_b32 {v(PH)}, {v(PH)}, {v(T1)}, vcc
          v_mov_b32 {v(T1)}, {fhex(math.sqrt(2.0))}
          v_cndmask_b32 {v(AMP)}, {v(AMP)}, {v(T1)}, vcc
          v_cndmask_b32 {v(GA)}, {v(GA)}, {v(AL)}, vcc
          v_cndmask_b32 {v(AL)}, {v(AL)}, 0, vcc
          v_cndmask_b32 {v(BE)}, {v(BE)}, 0, vcc
          v_lshrrev_b32 {v(H)}, 5, v0
          v_mul_u32_u24 {v(H)}, 160, {v(H)}
          v_cvt_f32_u32 {v(H)}, {v(H)}''')
    def direct(dst, dexpr, seed):
        R = [dexpr, f'v_mul_f32 {v(T0)}, {v(T0)}, {v(K)}', f'v_mul_f32 {v(T1)}, s37, {v(T0)}', f'v_floor_f32 {v(T1)}, {v(T1)}',
             f'v_fmac_f32 {v(T0)}, {fhex(-640.0)}, {v(T1)}']
        R += [f'v_fma_f32 {v(T0)}, {v(T0)}, s37, {v(PH)}'] if seed else [f'v_mul_f32 {v(T0)}, s37, {v(T0)}']
        R += [f'v_cos_f32 {v(dst)}, {v(T0)}', 's_nop 0', f'v_mul_f32 {v(dst)}, {v(AMP) if seed else "2.0"}, {v(dst)}']
        return R
    A.extend(direct(K20, f'v_mov_b32 {v(T0)}, {fhex(20.0)}', False))
    for j in range(2):
        for e in range(2):
            A.extend(direct(ROW[j] + e, f'v_add_f32 {v(T0)}, {fhex(20.0*e + j)}, {v(H)}', True))
    A.extend(direct(K1, f'v_mov_b32 {v(T0)}, 1.0', False))
    for e in range(2, 8):
        for j in range(2):
            A(f'v_fma_f32 {v(ROW[j]+e)}, {v(K20)}, {v(ROW[j]+e-1)}, -{v(ROW[j]+e-2)}')
    def cvt(j): return [f'v_cvt_pk_bf16_f32 {v(BF[j&1] + q)}, {v(ROW[j&1] + 2*q)}, {v(ROW[j&1] + 2*q + 1)}' for q in range(4)]
    def adv(j): return [f'v_fma_f32 {v(ROW[j&1]+e)}, {v(K1)}, {v(ROW[(j-1)&1]+e)}, -{v(ROW[j&1]+e)}' for e in range(8)]
    A.extend(cvt(0))
    A(f'''v_and_b32 {v(T0)}, 15, v0
          v_add_u32 {v(T0)}, s28, {v(T0)}
          v_cmp_eq_u32 vcc, 0, {v(T0)}
          v_lshlrev_b32 {v(T0)}, 13, {v(T0)}
          s_lshl_b32 s30, s29, 6
          v_add_u32 {v(A1)}, s30, {v(T0)}
          v_add_u32 {v(A1+1)}, {16*8192}, {v(A1)}
          s_add_u32 s30, s30, {320*8192}
          v_sub_u32 {v(A2)}, s30, {v(T0)}
          v_subrev_u32 {v(A2+1)}, {16*8192}, {v(A2)}
          s_mul_i32 s30, s29, {160*8192}
          v_mov_b32 {v(T0)}, s30
          v_cndmask_b32 {v(A1)}, {v(A1)}, {v(T0)}, vcc
          v_add_u32 {v(T0)}, 64, {v(T0)}
          v_cndmask_b32 {v(A2)}, {v(A2)}, {v(T0)}, vcc
          v_bfe_u32 {v(T0)}, v0, 4, 1
          v_lshlrev_b32 {v(T0)}, 5, {v(T0)}
          v_lshrrev_b32 {v(T1)}, 5, v0
          v_lshl_add_u32 {v(T0)}, {v(T1)}, 4, {v(T0)}
          v_add_u32 {v(A1)}, {v(A1)}, {v(T0)}
          v_add_u32 {v(A1+1)}, {v(A1+1)}, {v(T0)}
          v_add_u32 {v(A2)}, {v(A2)}, {v(T0)}
          v_add_u32 {v(A2+1)}, {v(A2+1)}, {v(T0)}
          s_lshl_b32 s30, s17, 7
          s_add_u32 s30, s30, {WS_Y}''')
    for j in range(20):
        b = j & 1
        nxt = aread(b ^ 1, j + 1) if j < 19 else []
        fill = (adv(j + 1) if 1 <= j < 19 else []) + (cvt(j + 1) if j < 19 else [])
        A('s_waitcnt lgkmcnt(0)')
        for q in range(2):
            d = ACC + 32 * q + 16 * b
            A(f'{MF32} {v(d, 16)}, {v(AFR[b] + 4*q, 4)}, {v(BF[b], 4)}, {"0" if j < 2 else v(d, 16)}')
            if nxt: A(nxt[q])
            A.extend(fill[q * len(fill) // 2:(q + 1) * len(fill) // 2])
        if j < 19: A('s_nop 0')
    E0, O0, E1, O1 = ACC, ACC + 16, ACC + 32, ACC + 48
    A('s_nop 4')
    for r in range(16): A(f'v_fmac_f32 {v(E0+r)}, {v(SG)}, {v(E1+r)}')
    for r in range(16): A(f'v_fmac_f32 {v(O0+r)}, {v(SG)}, {v(O1+r)}')
    for r in range(16): A(f'v_mul_f32 {v(E1+r)}, {v(BE)}, {v(E0+r)}')
    for r in range(16): A(f'v_fmac_f32 {v(E0+r)}, {v(AL)}, {v(O0+r)}')
    for r in range(16): A(f'v_fmac_f32 {v(E1+r)}, {v(GA)}, {v(O0+r)}')
    for n, (src, adr) in enumerate(((E0, A1), (E1, A2))):
        o = 24 + 8 * n
        for q in range(8): A(f'v_cvt_pk_bf16_f32 {v(o + q)}, {v(src + 2*q)}, {v(src + 2*q + 1)}')
        A('s_nop 1')
        for q in range(4): A(f'v_permlane16_swap_b32 {v(o + q)}, {v(o + 4 + q)}')
        A(f'buffer_store_dwordx4 {v(o, 4)}, {v(adr)}, {s(SWS,4)}, s30 offen{sc}')
        A(f'buffer_store_dwordx4 {v(o + 4, 4)}, {v(adr + 1)}, {s(SWS,4)}, s30 offen{sc}')
    A('s_add_u32 s36, s36, 8\ns_cmp_lt_u32 s36, 10\ns_cbranch_scc1 f1_unit')
    A.block('f1_side')

def side(A, sc=''):
    SL, SH, SE, SL0 = 24, 28, 32, 36
    A('s_waitcnt vmcnt(0)')
    A(f'''v_and_b32 v1, 1, v0
          v_lshlrev_b32 v1, 4, v1
          v_lshlrev_b32 v1, v1, 0x3f80        ; value in the low or high half
          v_bfe_u32 v2, v0, 1, 2              ; register index
          v_bfe_u32 v3, v0, 3, 1              ; n >> 3
          v_lshrrev_b32 v4, 4, v0             ; g''' .replace('v_lshlrev_b32 v1, v1, 0x3f80', 'v_mov_b32 v5, 0x3f80\nv_lshlrev_b32 v1, v1, v5'))
    for q in range(4):
        A(f'v_cmp_eq_u32 vcc, {q}, v2\ns_nop 1\nv_cndmask_b32 {v(SE + q)}, 0, v1, vcc')
    A('v_cmp_eq_u32 vcc, v3, v4\nv_add_u32 v5, 2, v3\nv_cmp_eq_u32 s[28:29], v5, v4')
    for q in range(4): A(f'v_cndmask_b32 {v(SL + q)}, 0, {v(SE + q)}, vcc')
    for q in range(4): A(f'v_cndmask_b32 {v(SH + q)}, 0, {v(SE + q)}, s[28:29]')
    A('v_cmp_eq_u32 vcc, 0, v3\nv_cmp_eq_u32 s[28:29], 0, v0\nv_mov_b32 v5, 0x3f00')
    for q in range(4): A(f'v_cndmask_b32 {v(SE + q)}, 0, {v(SE + q)}, vcc')
    A(f'v_cndmask_b32 {v(SL0)}, {v(SL)}, v5, s[28:29]\nv_mov_b32 {v(SL0+1)}, {v(SL)}')
    for n in range(10):
        A(f'{MF16} v[40:43], {v(CSL + 4*n, 4)}, {v(SE, 4)}, {"0" if n == 0 else "v[40:43]"}')
    A(f'''v_and_b32 v1, 15, v0
          s_lshr_b32 s28, s18, 1
          s_lshl_b32 s28, s28, 5
          v_add_u32 v1, s28, v1
          v_lshlrev_b32 v6, 4, v4
          s_lshr_b32 s28, s17, 3
          s_lshl_b32 s28, s28, 10
          s_and_b32 s29, s18, 1
          s_lshl_b32 s29, s29, 9
          s_add_u32 s28, s28, s29
          s_and_b32 s29, s17, 7
          s_lshl_b32 s29, s29, 6
          s_add_u32 s28, s28, s29
          s_add_u32 s30, s28, {WS_WT}
          v_lshlrev_b32 v7, 4, v0
          s_lshl_b32 s28, s16, 10
          s_add_u32 s28, s28, {L_CS}
          v_add_u32 v7, s28, v7
          ds_write_b128 v7, v[40:43]''')
    for r in range(3):
        if r != 1:
            A(f's_lshr_b32 s28, s18, 1\ns_cmp_eq_u32 s28, {0 if r == 0 else 2}\ns_cselect_b64 s[28:29], -1, 0')
            A(f'v_cndmask_b32 {v(SL)}, {v(SL0+1)}, {v(SL0)}, s[28:29]')
        else:
            A(f'v_mov_b32 {v(SL)}, {v(SL0+1)}')
        A('s_nop 1')
        for hi in range(2):
            for part in range(2):
                A(f'{MF16} {v(44 + 8*hi + 4*part, 4)}, {v(WTL + 8*r + 4*part, 4)}, {v(SH if hi else SL, 4)}, 0')
        for hi in range(2):
            A(f'''v_add_u32 v2, {128*r + 16*hi}, v1
                  v_cmp_lt_u32 vcc, 320, v2
                  v_lshl_add_u32 v2, v2, 13, v6''')
            A(f'v_mov_b32 v3, 0x80000000\nv_cndmask_b32 {v(8+hi)}, v2, v3, vcc')
        for hi in range(2):
            o = 12 + 4 * hi
            for jj in range(4): A(f'v_cvt_pk_bf16_f32 {v(o + jj)}, {v(44 + 8*hi + jj)}, {v(48 + 8*hi + jj)}')
            A(f'buffer_store_dwordx4 {v(o, 4)}, {v(8+hi)}, {s(SWS,4)}, s30 offen{sc}')
    A('s_waitcnt lgkmcnt(0)\ns_barrier')
    A(f'''s_cmp_ge_u32 s17, 48
          s_cbranch_scc1 f1_nowd
          v_lshrrev_b32 v1, 5, v0
          v_lshlrev_b32 v1, 4, v1
          v_bfe_u32 v2, v0, 4, 1
          v_lshl_add_u32 v1, v2, 2, v1
          v_bfe_u32 v2, v0, 2, 2
          v_add_u32 v1, v1, v2
          v_mul_u32_u24 v1, 1280, v1
          s_mul_i32 s28, s16, 160
          s_add_u32 s28, s28, {L_WD}
          v_add_u32 v1, s28, v1
          v_and_b32 v2, 3, v0
          v_lshl_add_u32 v3, v2, 3, v1
          v_lshl_add_u32 v2, v2, 4, v1''')
    for t in range(5):
        for q in range(2):
            off = 10240 * q + (64 * (t >> 1) + 8 * (t & 1) if t < 4 else 128)
            A(f'ds_read_b64_tr_b16 {v(40 + 4*t + 2*q, 2)}, {"v2" if t < 4 else "v3"} offset:{off}')
    A(f'''s_mul_i32 s28, s16, 240
          s_mul_i32 s29, s17, 5
          s_add_u32 s28, s28, s29
          s_lshl_b32 s28, s28, 10
          s_add_u32 s28, s28, {WS_WD}
          s_add_u32 s29, s28, 4096
          v_lshlrev_b32 v1, 4, v0''')
    for t in range(5):
        A(f's_waitcnt lgkmcnt({8 - 2*t})')
        A(f'buffer_store_dwordx4 {v(40 + 4*t, 4)}, v1, {s(SWS,4)}, {"s28" if t < 4 else "s29"} offen offset:{1024 * (t & 3)}{sc}')
    A(f'''f1_nowd:
          s_cmp_lt_u32 s17, 16
          s_cbranch_scc1 f1_nocs
          s_cmp_lg_u32 s16, 7
          s_cbranch_scc1 f1_nocs
          v_lshrrev_b32 v1, 5, v0
          v_lshlrev_b32 v1, 8, v1
          v_and_b32 v2, 7, v0
          v_lshl_add_u32 v1, v2, 4, v1
          v_bfe_u32 v2, v0, 3, 2
          v_lshl_add_u32 v1, v2, 2, v1
          v_add_u32 v1, {L_CS}, v1''')
    for half in range(2):
        for n in range(8): A(f'ds_read_b32 {v(64 + 8*half + n)}, v1 offset:{1024*n + 512*half}')
    A('s_waitcnt lgkmcnt(0)')
    for n in (8, 4, 2, 1):
        for q in range(n): A(f'v_add_f32 {v(64 + q)}, {v(64 + q)}, {v(64 + n + q)}')
    A(f'''v_cvt_pk_bf16_f32 v2, v64, v64
          v_lshlrev_b32 v2, 16, v2
          v_sub_f32 v3, v64, v2
          v_cvt_pk_bf16_f32 v2, v2, v3
          v_lshrrev_b32 v3, 4, v0
          v_lshlrev_b32 v3, 7, v3
          v_and_b32 v4, 15, v0
          v_lshl_add_u32 v3, v4, 2, v3
          s_lshl_b32 s28, s19, 9
          s_cmp_ge_u32 s17, 40
          s_cselect_b32 s29, 64, 0
          s_add_u32 s28, s28, s29
          s_add_u32 s28, s28, {WS_CS}
          buffer_store_dword v2, v3, {s(SWS,4)}, s28 offen{sc}
          f1_nocs:''')
```

```python
from asmlib import *
from layout import *
import math

LOG2E = 1.4426950408889634
GC1 = -2 * math.sqrt(2 / math.pi) * LOG2E
GC2 = GC1 * 0.044715

STAGE = 49152
ACC = 128
XB = (64, 88); WB = (72, 96)
VXA, VWA, VA, VB = 2, 6, 10, 12
VC = 48
VCS, VSTAT = 112, 116
VST = 13
S_X, S_W, S_WS = 4, 8, 12
S_WAVE, S_RB, S_CB = 16, 17, 18
S_OFFA, S_OFFB, S_LX, S_LW, S_CNT, S_DELTA, S_STG = 20, 21, 22, 23, 24, 25, 26

def acc(i, t): return ACC + 16 * (4 * i + t)

def reads(buf, j):
    xb, wb = XB[buf], WB[buf]
    out = []
    def xr(i): return f'ds_read_b128 {v(xb + 4*i, 4)}, {v(VXA + j)} offset:{4096*i}'
    def wr(t, q): return f'ds_read_b64_tr_b16 {v(wb + 4*t + 2*q, 2)}, {v(VWA + t)} offset:{(16*j + 4*q) * 256}'
    out += [xr(0), wr(0, 0), wr(0, 1), xr(1), wr(1, 0), wr(1, 1), wr(2, 0), wr(2, 1), wr(3, 0), wr(3, 1)]
    return out

def mfmas(buf):
    xb, wb = XB[buf], WB[buf]
    return [f'v_mfma_f32_32x32x16_bf16 {v(acc(i, t), 16)}, {v(wb + 4*t, 4)}, {v(xb + 4*i, 4)}, {v(acc(i, t), 16)}'
            for t in range(4) for i in range(2)]

def dma(n):
    if n < 4:
        so = S_OFFA if n < 2 else S_OFFA + 7
        return (f's_add_u32 m0, {s(S_LX)}, {1024*n}', f'buffer_load_dwordx4 {v(VA + (n & 1))}, {s(S_X, 4)}, {s(so)} offen lds')
    m = n - 4
    return (f's_add_u32 m0, {s(S_LW)}, {1024*m}', f'buffer_load_dwordx4 {v(20 + m)}, {s(S_W, 4)}, {s(S_OFFB)} offen lds')

def dma_advance():
    return [f's_add_u32 {s(S_OFFA)}, {s(S_OFFA)}, 128',
            f's_add_u32 {s(S_OFFA+7)}, {s(S_OFFA+7)}, 128',
            f's_add_u32 {s(S_OFFB)}, {s(S_OFFB)}, {64*3072}',
            f's_add_u32 {s(S_STG)}, {s(S_STG)}, 1',
            f's_cmp_eq_u32 {s(S_STG)}, 3',
            f's_cselect_b32 {s(28)}, s33, s32',
            f's_cselect_b32 {s(S_STG)}, 0, {s(S_STG)}',
            f's_add_u32 {s(S_LX)}, {s(S_LX)}, {s(28)}',
            f's_add_u32 {s(S_LW)}, {s(S_LW)}, {s(28)}']

def prologue(A, x_ptr_off, x_ws_off=None, ext_early=True):
    if x_ws_off is None:
        A(f's_mov_b32 s4, s40\ns_mov_b32 s5, s41')
    else:
        A(f's_add_u32 s4, s58, {x_ws_off}\ns_addc_u32 s5, s59, 0')
    A(f's_mov_b32 s6, {S*D*2}\ns_mov_b32 s7, 0x20000')
    A(f's_cmp_lt_u32 s16, 2\ns_cselect_b32 s8, s48, s50\ns_cselect_b32 s9, s49, s51')
    A(f's_mov_b32 s10, {D*F*2}\ns_mov_b32 s11, 0x20000')
    A(f's_mov_b32 s12, s58\ns_mov_b32 s13, s59\ns_mov_b32 s14, {WS_SIZE}\ns_mov_b32 s15, 0x20000')
    A('''v_lshrrev_b32 v30, 3, v0            ; r = l>>3 (0..7)
         v_and_b32 v31, 3, v30
         v_lshrrev_b32 v32, 2, v30
         v_lshl_add_u32 v31, v32, 3, v31
         s_and_b32 s28, s16, 1
         s_lshl_b32 s28, s28, 4              ; 16c
         v_add_u32 v31, s28, v31
         s_lshr_b32 s29, s16, 1
         s_lshl_b32 s30, s17, 1
         s_add_u32 s29, s29, s30             ; b
         s_lshl_b32 s29, s29, 1              ; 2b
         v_lshl_add_u32 v31, v31, 6, s29     ; s = 64 s1 + 2b
         s_movk_i32 s30, 1280
         v_mul_lo_u32 v31, v31, s30
         v_and_b32 v32, 7, v0
         v_lshrrev_b32 v33, 4, v0            ; (rho>>1)&7 = 4(n&1) + (l>>4)
         v_xor_b32 v34, v32, v33''')
    A(f'v_lshl_add_u32 {v(VA)}, v34, 4, v31')
    A(f'v_xor_b32 v34, 4, v34\nv_lshl_add_u32 {v(VA+1)}, v34, 4, v31')
    A(f'v_add_u32 {v(VA+1)}, {4*64*1280}, {v(VA+1)}')
    A(f's_mov_b32 {s(S_OFFA)}, 0\ns_movk_i32 {s(S_OFFA+7)}, 1280')
    A('''v_lshrrev_b32 v30, 4, v0
         s_lshr_b32 s28, s16, 1
         s_lshl_b32 s28, s28, 2              ; 4 up
         v_or_b32 v31, s28, v30
         v_bfe_u32 v32, v0, 1, 3
         v_xor_b32 v31, v31, v32
         v_lshlrev_b32 v31, 5, v31
         v_and_b32 v32, 1, v0
         v_lshl_add_u32 v31, v32, 4, v31
         s_movk_i32 s30, 3072
         v_mad_u32_u24 v20, v30, s30, v31''')
    for m in range(1, 8):
        A(f'v_add_u32 {v(20+m)}, {4*3072*m}, v20')
    A(f'''s_and_b32 s28, s16, 1
          s_mul_i32 s28, s28, {32*3072}
          s_lshl_b32 s29, s18, 8
          s_add_u32 {s(S_OFFB)}, s28, s29
          s_lshl_b32 {s(S_LX)}, s16, 12
          s_lshl_b32 {s(S_LW)}, s16, 13
          s_add_u32 {s(S_LW)}, {s(S_LW)}, 16384
          s_mov_b32 {s(S_STG)}, 0
          s_mov_b32 s32, {STAGE}
          s_mov_b32 s33, {-2*STAGE}''')
    if ext_early: ext_load(A)
    for sl in range(2):
        for n in range(12):
            m, l = dma(n); A(m); A('s_nop 0'); A(l)
        A.extend(dma_advance())
    for n in range(3):
        m, l = dma(n); A(m); A('s_nop 0'); A(l)
    A('''v_and_b32 v30, 31, v0
         s_lshr_b32 s28, s16, 1
         s_lshl_b32 s28, s28, 13
         v_lshl_add_u32 v31, v30, 7, s28
         v_bfe_u32 v32, v0, 1, 3
         v_lshrrev_b32 v33, 5, v0
         v_xor_b32 v32, v32, v33''')
    for j in range(4):
        A(f'v_xor_b32 v33, {2*j}, v32\nv_lshl_add_u32 {v(VXA+j)}, v33, 4, v31')
    A('''v_bfe_u32 v30, v0, 4, 1             ; up
         v_bfe_u32 v31, v0, 2, 2             ; r
         v_lshrrev_b32 v32, 5, v0            ; h
         v_lshl_add_u32 v33, v32, 3, v31     ; 8h + r
         v_lshlrev_b32 v33, 8, v33
         v_lshl_add_u32 v33, v30, 14, v33
         v_and_b32 v34, 3, v0
         v_lshl_add_u32 v33, v34, 3, v33
         v_add_u32 v33, 16384, v33
         v_lshl_add_u32 v31, v30, 2, v31     ; r + 4up
         s_and_b32 s28, s16, 1
         s_lshl_b32 s28, s28, 2
         v_xor_b32 v31, s28, v31''')
    for t in range(4):
        A(f'v_xor_b32 v34, {t}, v31\nv_lshl_add_u32 {v(VWA+t)}, v34, 5, v33')
    for r in range(ACC, ACC + 128):
        A(f'v_mov_b32 {v(r)}, 0')
    A(f'''v_bfe_u32 v30, v0, 4, 1
          v_mul_u32_u24 v30, 49152, v30
          v_lshrrev_b32 v31, 5, v0
          v_lshl_add_u32 v30, v31, 8, v30
          v_and_b32 v31, 15, v0
          v_lshl_add_u32 {v(VST)}, v31, 4, v30''')
    A('s_waitcnt vmcnt(15)\ns_barrier')
    A.extend(reads(0, 0))
    A(f's_mov_b32 {s(S_CNT)}, 0\ns_mov_b32 s29, 0')

def slab(A, first_dma=True):
    for j in range(4):
        buf = j & 1
        rd = reads(buf ^ 1, (j + 1) & 3)
        ns = (3, 4, 5) if j == 0 else (6, 7, 8) if j == 1 else (9, 10, 11) if j == 2 else (0, 1, 2)
        d = [dma(n) for n in ns]
        fill = [rd[0], rd[1], [rd[2], d[0][0]], [rd[3]], [rd[4], d[0][1]], [rd[5], d[1][0]], [rd[6]], [rd[7], d[1][1]], [rd[8], d[2][0]], [rd[9]], [d[2][1]]]
        mf = mfmas(buf)
        seq = []
        if j == 3:
            A('s_waitcnt vmcnt(12) lgkmcnt(0)\ns_barrier')
        else:
            A('s_waitcnt lgkmcnt(0)')
        plan = [2, 2, 2, 2, 2, 1, 0, 0]
        k = 0
        for g, m in enumerate(mf):
            seq.append(m)
            for _ in range(plan[g]):
                f = fill[k]; k += 1
                seq += f if isinstance(f, list) else [f]
            if j == 2 and g == 5:
                seq += dma_advance()[:3]
                seq += [f's_add_u32 s29, s29, 1', 's_cmp_eq_u32 s29, 3', f's_cselect_b32 {s(S_DELTA)}, s33, s32', 's_cselect_b32 s29, 0, s29']
            if j == 2 and g == 6:
                seq += [f'v_add_u32 {v(VXA+q)}, {s(S_DELTA)}, {v(VXA+q)}' for q in range(4)]
                seq += dma_advance()[3:7]
            if j == 2 and g == 7:
                seq += [f'v_add_u32 {v(VWA+q)}, {s(S_DELTA)}, {v(VWA+q)}' for q in range(4)]
                seq += dma_advance()[7:]
                seq += [f's_cmp_ge_u32 {s(S_CNT)}, 7', f's_cselect_b32 s6, 0, s6', f's_cselect_b32 s10, 0, s10']
        A.extend(seq)

def mainloop(A, name):
    A.block(name + '_loop')
    slab(A)
    A(f's_add_u32 {s(S_CNT)}, {s(S_CNT)}, 1\ns_cmp_lt_u32 {s(S_CNT)}, 10\ns_cbranch_scc1 {name}_loop')
    A.block(name + '_epi')

def gelu_tile(b, T, out, i):
    L = []
    P = lambda r: v(r, 2)
    bc = 'op_sel_hi:[1,0,0]'
    VC1, VC2, VIR = VC + 6*i, VC + 6*i + 2, VC + 6*i + 4
    for q in range(4): L.append(f'v_pk_mul_f32 {P(T+2*q)}, {P(b+2*q)}, {P(b+2*q)}')
    for q in range(4): L.append(f'v_pk_fma_f32 {P(T+2*q)}, {P(T+2*q)}, {P(VC2)}, {P(VC1)} {bc}')
    for q in range(4): L.append(f'v_pk_mul_f32 {P(T+2*q)}, {P(T+2*q)}, {P(b+2*q)}')
    for q in range(8): L.append(f'v_exp_f32 {v(T+q)}, {v(T+q)}')
    for q in range(4): L.append(f'v_pk_mul_f32 {P(T+8+2*q)}, {P(b+2*q)}, {P(b+8+2*q)}')
    for q in range(4): L.append(f'v_pk_fma_f32 {P(T+2*q)}, {P(T+2*q)}, {P(VIR)}, {P(VIR)} {bc}')
    for q in range(8): L.append(f'v_rcp_f32 {v(T+q)}, {v(T+q)}')
    L.append('s_nop 0')
    for q in range(4): L.append(f'v_pk_mul_f32 {P(T+2*q)}, {P(T+2*q)}, {P(T+8+2*q)}')
    for q in range(4): L.append(f'v_cvt_pk_bf16_f32 {v(out+q)}, {v(T+2*q)}, {v(T+2*q+1)}')
    return L

def ext_load(A, sc=''):
    A(f'''v_and_b32 v30, 31, v0
          v_lshlrev_b32 v31, 3, v30
          v_lshlrev_b32 v30, 2, v30
          s_lshl_b32 s28, s18, 1
          s_and_b32 s29, s16, 1
          s_add_u32 s28, s28, s29
          s_lshl_b32 s28, s28, 9
          s_add_u32 s28, s28, {WS_CS}
          s_lshl_b32 s29, s17, 1
          s_lshr_b32 s30, s16, 1
          s_add_u32 s29, s29, s30
          s_lshl_b32 s29, s29, 9
          s_add_u32 s29, s29, {WS_ST}''')
    for t in range(4): A(f'buffer_load_dword {v(VCS + t)}, v30, {s(S_WS, 4)}, s28 offen offset:{128*t}{sc}')
    for i in range(2): A(f'buffer_load_dwordx2 {v(VSTAT + 2*i, 2)}, v31, {s(S_WS, 4)}, s29 offen offset:{256*i}{sc}')

def ext_apply(A):
    xb, wb = XB[0], WB[0]
    A('s_waitcnt lgkmcnt(0)\nv_cmp_gt_u32 vcc, 32, v0')
    for t in range(4):
        A(f'v_mov_b32 {v(wb + 4*t)}, {v(VCS + t)}')
        for q in range(1, 4): A(f'v_mov_b32 {v(wb + 4*t + q)}, 0')
    for i in range(2):
        A(f'v_cndmask_b32 {v(xb + 4*i)}, 0, {v(VSTAT + 2*i)}, vcc')
        for q in range(1, 4): A(f'v_mov_b32 {v(xb + 4*i + q)}, 0')
    A('s_nop 1')
    mf = mfmas(0)
    fill = []
    for i in range(2):
        r = VSTAT + 2 * i + 1; c = VC + 6 * i
        fill += [f'v_mul_f32 {v(c+4)}, {v(r)}, {v(r)}', f'v_mul_f32 {v(c)}, {fhex(GC1)}, {v(r)}', f'v_mul_f32 {v(c+2)}, {v(c+4)}, {v(r)}',
                 f'v_rcp_f32 {v(c+4)}, {v(c+4)}', f'v_mul_f32 {v(c+2)}, {fhex(GC2)}, {v(c+2)}']
    A.extend(interleave(mf, fill))

def epilogue(A, sc=''):
    A(f'''s_lshl_b32 s28, s17, 3
          s_lshr_b32 s29, s16, 1
          s_lshl_b32 s29, s29, 2
          s_add_u32 s28, s28, s29
          s_mul_i32 s28, s28, 49152
          s_lshl_b32 s29, s18, 2
          s_and_b32 s30, s16, 1
          s_lshl_b32 s30, s30, 1
          s_add_u32 s29, s29, s30
          s_lshl_b32 s29, s29, 10
          s_add_u32 s28, s28, s29
          s_add_u32 s28, s28, {WS_H}
          s_add_u32 s29, s28, {2*49152}
          s_waitcnt lgkmcnt(0)''')
    n = 0
    for t in range(4):
        for i in range(2):
            out = 64 + 4 * (n % 4); n += 1
            A.extend(gelu_tile(acc(i, t), 32, out, i))
            A(f'buffer_store_dwordx4 {v(out, 4)}, {v(VST)}, {s(S_WS, 4)}, {s(28 + i)} offen offset:{(t >> 1) * 1024 + (t & 1) * 512}{sc}')
```

```python
from asmlib import *
from layout import *
import math
LOG2E = 1.4426950408889634

T_BASE = 61440
SLOT = 20480
ACCY, ACCS = 8, 28
AF = (48, 68)
HB = 88
XR = 136
VH, VRD, VUR, VXO, VTW = 2, 3, 4, 5, 6
VU = 146
GS = 150
S_X, S_O, S_WS = 4, 8, 12
S_B, S_CB = 17, 18
S_H, S_WD, S_U = 20, 21, 22

def tgen_chain(slot):
    L = []
    c0, c1 = GS, GS + 8
    K1, K10, N, A0, T0, T1, SP = GS + 16, GS + 17, GS + 18, GS + 19, GS + 20, GS + 21, GS + 22
    PK = GS + 24
    amp = 2.0 / 640
    p = 80 + 5 * slot
    L += [f'v_bfe_u32 {v(T0)}, v0, 2, 2', f'v_lshlrev_b32 {v(T0)}, {s(p+1)}, {v(T0)}', f'v_and_b32 {v(T1)}, 3, v0',
          f'v_add3_u32 {v(T0)}, {v(T0)}, {v(T1)}, {s(p)}', f'v_cvt_f32_u32 {v(N)}, {v(T0)}',
          f'v_add_u32 {v(VTW)}, {s(p+2)}, {v(VH)}',
          f'v_and_b32 {v(T1)}, 1, v0', f'v_lshlrev_b32 {v(T1)}, 31, {v(T1)}', f'v_xor_b32 {v(SP)}, {fhex(amp)}, {v(T1)}',
          f'v_cmp_gt_u32 s[36:37], {s(p+4)}, v0',
          f'v_lshrrev_b32 {v(A0)}, 4, v0', f'v_mul_u32_u24 {v(A0)}, 80, {v(A0)}', f'v_cvt_f32_u32 {v(A0)}, {v(A0)}']
    def direct(dst, kexpr, phase, scale):
        R = list(kexpr)
        R += [f'v_mul_f32 {v(T0)}, {v(T0)}, {v(N)}',
              f'v_mul_f32 {v(T1)}, s35, {v(T0)}', f'v_floor_f32 {v(T1)}, {v(T1)}',
              f'v_fmac_f32 {v(T0)}, {fhex(-640.0)}, {v(T1)}']
        R += [f'v_mul_f32 {v(T0)}, s35, {v(T0)}']
        if phase: R += [f'v_add_f32 {v(T0)}, {s(p+3)}, {v(T0)}']
        R += [f'v_cos_f32 {v(dst)}, {v(T0)}', 's_nop 0', f'v_mul_f32 {v(dst)}, {fhex(scale)}, {v(dst)}']
        return R
    L += direct(K1, [f'v_mov_b32 {v(T0)}, 1.0'], False, 2.0)
    L += direct(K10, [f'v_mov_b32 {v(T0)}, {fhex(10.0)}'], False, 2.0)
    for j, row in ((0, c0), (1, c1)):
        for e in (0, 1):
            L += direct(row + e, [f'v_add_f32 {v(T0)}, {fhex(10.0*e + j)}, {v(A0)}'], True, amp)
    for e in range(2, 8):
        for row in (c0, c1):
            L.append(f'v_fma_f32 {v(row+e)}, {v(K10)}, {v(row+e-1)}, -{v(row+e-2)}')
    rows = [c0, c1]
    for j in range(10):
        row = rows[j & 1]
        if j >= 2:
            for e in range(8):
                L.append(f'v_fma_f32 {v(row+e)}, {v(K1)}, {v(rows[(j-1)&1]+e)}, -{v(row+e)}')
        pk = PK + 4 * (j & 1)
        first = row
        if j == 0:
            L.append(f'v_cndmask_b32 {v(T0)}, {v(row)}, {v(SP)}, s[36:37]'); first = T0
        for q in range(4):
            L.append(f'v_cvt_pk_bf16_f32 {v(pk+q)}, {v(first if q == 0 else row+2*q)}, {v(row+2*q+1)}')
        L.append(f'ds_write_b128 {v(VTW)}, {v(pk, 4)} offset:{5120*j}')
    return L

def tgen_params(slot):
    p = 80 + 5 * slot
    return [f's_add_u32 s28, s16, {4*slot}', 's_cmp_ge_u32 s28, 10', 's_cselect_b32 s29, 2, 0', 's_sub_u32 s28, s28, s29',
          's_cmp_ge_u32 s28, 5', 's_cselect_b32 s30, 1, 0', 's_cselect_b32 s29, 5, 0', 's_sub_u32 s28, s28, s29',
          's_lshr_b32 s29, s28, 1', 's_lshl_b32 s29, s29, 5', 's_and_b32 s31, s28, 1', 's_lshl_b32 s31, s31, 2', 's_add_u32 s29, s29, s31',
          's_mul_i32 s31, s18, 80', f's_add_u32 {s(p)}, s29, s31',
          's_cmp_eq_u32 s28, 4', f's_cselect_b32 {s(p+1)}, 2, 3',
          's_mul_i32 s31, s30, 50', 's_add_u32 s31, s31, s28', 's_lshl_b32 s31, s31, 10', f's_add_u32 {s(p+2)}, s31, {T_BASE}',
          f's_mul_i32 {s(p+3)}, s30, 0x3e800000', f's_lshl_b32 {s(p+4)}, s30, 4']

NG2, NG = 12, 17
def group_dma(G):
    slot = (G % 3) * SLOT
    out = []
    if G < NG2:
        for i in range(5):
            out.append((f's_add_u32 m0, s23, {slot + 4096*i}', f'buffer_load_dwordx4 {v(VH)}, {s(S_WS,4)}, {s(S_WD)} offen lds', f's_add_u32 {s(S_WD)}, {s(S_WD)}, 4096'))
    elif G < NG:
        for i in range(4):
            out.append((f's_add_u32 m0, s24, {slot + 1024*i}', f'buffer_load_dwordx4 {v(VU+i)}, {s(S_WS,4)}, {s(S_U)} offen lds',
                        f's_add_u32 {s(S_U)}, {s(S_U)}, {128*4096}' if i == 3 else None))
    return out
def h_load(G, i):
    if G >= NG2: return None
    r = HB + 16 * (G % 3) + 4 * i
    return f'buffer_load_dwordx4 {v(r, 4)}, {v(VH)}, {s(S_WS,4)}, {s(S_H)} offen offset:{1024*i}'

def a_reads(G, kk, buf):
    if G < NG2:
        return [f'ds_read_b128 {v(AF[buf] + 4*t, 4)}, {v(VH)} offset:{(G % 3) * SLOT + (5*kk + t) * 1024}' for t in range(5)]
    j = 4 * (G - NG2) + kk
    big = (5 * j + 4) * 1024 >= 65536
    rd = [f'ds_read_b128 {v(AF[buf] + 4*t, 4)}, {v(VRD + 0 if not big else 7)} offset:{(5*j + t) * 1024 - (51200 if big else 0)}' for t in range(5)]
    ub = HB + 4 * buf
    ur = [f'ds_read_b64_tr_b16 {v(ub + 2*q, 2)}, {v(VUR)} offset:{(G % 3) * SLOT + 4096*kk + 512*q}' for q in range(2)]
    return ur + rd
def mfmas(G, kk, buf):
    out = []
    for t in range(5):
        if G < NG2:
            d = ACCY + 4 * t; b = HB + 16 * (G % 3) + 4 * kk; first = (G == 0 and kk == 0)
        else:
            d = ACCS + 4 * t; b = HB + 4 * buf; first = (G == NG2 and kk == 0)
        out.append(f'v_mfma_f32_16x16x32_bf16 {v(d, 4)}, {v(AF[buf] + 4*t, 4)}, {v(b, 4)}, {"0" if first else v(d, 4)}')
    return out

def body(A, stamp=lambda i: None):
    vm = VM()
    A(f'''s_mov_b32 s4, s40\ns_mov_b32 s5, s41\ns_mov_b32 s6, {S*D*2}\ns_mov_b32 s7, 0x20000
          s_mov_b32 s8, s54\ns_mov_b32 s9, s55\ns_mov_b32 s10, {S*D*2}\ns_mov_b32 s11, 0x20000
          s_mov_b32 s12, s58\ns_mov_b32 s13, s59\ns_mov_b32 s14, {WS_SIZE}\ns_mov_b32 s15, 0x20000
          v_lshlrev_b32 {v(VH)}, 4, v0
          s_mul_i32 {s(S_WD)}, s18, {48*5*1024}
          s_lshl_b32 s23, s16, 10
          s_add_u32 {s(S_WD)}, {s(S_WD)}, s23
          s_add_u32 {s(S_WD)}, {s(S_WD)}, {WS_WD}
          s_lshl_b32 s28, s17, 2
          s_add_u32 s28, s28, s16
          s_mul_i32 {s(S_H)}, s28, 49152
          s_add_u32 {s(S_H)}, {s(S_H)}, {WS_H}''')
    def issue_dma(d, tag, nop=True):
        A(d[0])
        if nop: A('s_nop 0')
        A(d[1]); vm.issue(tag)
        if d[2]: A(d[2])
    def issue_h(G, i):
        A(h_load(G, i)); vm.issue(('h', G))
        if i == 3: A(f's_add_u32 {s(S_H)}, {s(S_H)}, 4096')
    for G in range(2):
        for d in group_dma(G): issue_dma(d, ('d', G))
        for i in range(4): issue_h(G, i)
    d2 = group_dma(2)
    issue_dma(d2[0], ('d', 2)); issue_dma(d2[1], ('d', 2)); issue_h(2, 0)
    A(f'''v_and_b32 v7, 3, v0
          v_bfe_u32 v8, v0, 2, 1
          v_lshl_add_u32 v7, v8, 3, v7
          v_bfe_u32 v8, v0, 3, 1
          v_lshl_add_u32 v7, v8, 2, v7
          s_lshr_b32 s28, s16, 1
          s_lshl_b32 s28, s28, 4
          v_add_u32 v7, s28, v7               ; s1
          s_lshl_b32 s28, s17, 1
          s_and_b32 s29, s16, 1
          s_add_u32 s28, s28, s29
          v_lshl_add_u32 v7, v7, 6, s28
          s_movk_i32 s29, 1280
          v_mul_lo_u32 v7, v7, s29
          s_mul_i32 s28, s18, 160
          v_lshrrev_b32 v8, 4, v0
          v_lshl_add_u32 v9, v8, 4, v7
          v_add_u32 {v(VXO)}, s28, v9
          v_lshl_add_u32 v9, v8, 3, v7
          v_add_u32 v1, s28, v9''')
    A(f'buffer_load_dwordx4 {v(XR, 4)}, {v(VXO)}, {s(S_X,4)}, 0 offen'); vm.issue('x')
    A(f'buffer_load_dwordx4 {v(XR+4, 4)}, {v(VXO)}, {s(S_X,4)}, 0 offen offset:64'); vm.issue('x')
    A(f'buffer_load_dwordx2 {v(XR+8, 2)}, v1, {s(S_X,4)}, 0 offen offset:128'); vm.issue('x')
    A(f'''v_lshrrev_b32 v7, 3, v0
          v_lshlrev_b32 v7, 12, v7
          v_bfe_u32 v8, v0, 1, 2
          v_bfe_u32 v9, v0, 4, 1
          v_xor_b32 v8, v8, v9
          v_and_b32 v9, 1, v0
          v_lshl_add_u32 v7, v9, 4, v7
          v_lshl_add_u32 {v(VU)}, v8, 5, v7
          v_xor_b32 v8, 2, v8
          v_lshl_add_u32 {v(VU+1)}, v8, 5, v7
          v_add_u32 {v(VU+1)}, {8*4096}, {v(VU+1)}
          v_add_u32 {v(VU+2)}, {16*4096}, {v(VU)}
          v_add_u32 {v(VU+3)}, {16*4096}, {v(VU+1)}
          s_lshl_b32 s24, s16, 12
          s_lshl_b32 {s(S_U)}, s16, 17
          s_lshl_b32 s28, s17, 7
          s_add_u32 {s(S_U)}, {s(S_U)}, s28
          s_add_u32 {s(S_U)}, {s(S_U)}, {WS_U}
          v_lshrrev_b32 v7, 4, v0             ; g
          v_bfe_u32 v8, v0, 2, 2              ; r
          v_lshl_add_u32 v9, v7, 3, v8
          v_lshlrev_b32 v9, 7, v9
          v_and_b32 v7, 1, v7
          v_lshrrev_b32 v8, 1, v8
          v_lshl_add_u32 v7, v7, 1, v8        ; f = b1 + 2 b3
          v_xor_b32 v7, s16, v7
          v_lshl_add_u32 v9, v7, 5, v9
          v_and_b32 v7, 3, v0
          v_lshl_add_u32 {v(VUR)}, v7, 3, v9
          v_add_u32 {v(VRD)}, {T_BASE}, {v(VH)}
          v_add_u32 v7, {T_BASE + 51200}, {v(VH)}
          s_mov_b32 s35, {fhex(1.0/640)}''')
    for sl in range(3): A.extend(tgen_params(sl))
    gen = tgen_chain(0) + tgen_chain(1) + tgen_chain(2)
    npre = 150
    A.extend(gen[:npre]); gen = gen[npre:]
    A(f's_waitcnt vmcnt({vm.count(("d", 0), ("h", 0))})\ns_barrier')
    stamp(3)
    A.extend(a_reads(0, 0, 0))
    per = -(-len(gen) // (4 * 9))
    step = 0
    for G in range(NG):
        if G == NG2: stamp(4)
        for kk in range(4):
            buf = step & 1; step += 1
            last = (G == NG - 1 and kk == 3)
            nG, nk = (G, kk + 1) if kk < 3 else (G + 1, 0)
            rd = [] if last else a_reads(nG, nk, buf ^ 1)
            if kk == 3 and not last:
                A(f's_waitcnt vmcnt({vm.count(("d", G+1), ("h", G+1))}) lgkmcnt(0)\ns_barrier')
            else:
                A('s_waitcnt lgkmcnt(0)')
            lG = G + 3 if kk == 3 else G + 2
            dl = group_dma(lG)
            idx = {3: (0, 1), 0: (2,), 1: (3,), 2: (4,)}[kk]
            ds = [dl[i] for i in idx if i < len(dl)]
            hi = (kk + 1) & 3
            hl = h_load(lG, hi)
            mf = mfmas(G, kk, buf)
            g = gen[:per]; gen = gen[per:]
            seq = []
            for t, m in enumerate(mf):
                A(m)
                k0 = (len(rd) * t) // 4; k1 = (len(rd) * (t + 1)) // 4
                if t < 4:
                    if t < len(ds): A(ds[t][0])
                    A.extend(rd[k0:k1])
                    if t < len(ds):
                        if k1 == k0: A('s_nop 0')
                        A(ds[t][1]); vm.issue(('d', lG))
                        if ds[t][2]: A(ds[t][2])
                    if t == 2 and hl: issue_h(lG, hi)
                A.extend(g[(len(g) * t) // 5:(len(g) * (t + 1)) // 5])
    assert not gen
    stamp(5)
    T = AF[0]
    A(f's_mov_b32 s28, {fhex(-LOG2E)}\ns_waitcnt vmcnt(0)')
    for r in range(20): A(f'v_mul_f32 {v(T+r)}, s28, {v(ACCY+r)}')
    for r in range(20): A(f'v_exp_f32 {v(T+r)}, {v(T+r)}')
    for r in range(0, 20, 2): A(f'v_pk_mul_f32 {v(ACCY+r, 2)}, {v(ACCY+r, 2)}, {v(ACCS+r, 2)}')
    for r in range(20): A(f'v_add_f32 {v(T+r)}, 1.0, {v(T+r)}')
    for r in range(20): A(f'v_rcp_f32 {v(T+r)}, {v(T+r)}')
    for r in range(10):
        A(f'v_lshlrev_b32 {v(ACCS+2*r)}, 16, {v(XR+r)}\nv_and_b32 {v(ACCS+2*r+1)}, 0xffff0000, {v(XR+r)}')
    for r in range(0, 20, 2): A(f'v_pk_fma_f32 {v(T+r, 2)}, {v(T+r, 2)}, {v(ACCY+r, 2)}, {v(ACCS+r, 2)}')
    for r in range(10): A(f'v_cvt_pk_bf16_f32 {v(XR+r)}, {v(T+2*r)}, {v(T+2*r+1)}')
    A(f'buffer_store_dwordx4 {v(XR, 4)}, {v(VXO)}, {s(S_O,4)}, 0 offen')
    A(f'buffer_store_dwordx4 {v(XR+4, 4)}, {v(VXO)}, {s(S_O,4)}, 0 offen offset:64')
    A(f'buffer_store_dwordx2 {v(XR+8, 2)}, v1, {s(S_O,4)}, 0 offen offset:128')
```

```python
import numpy as np
S, D, F = 2048, 640, 1536
WS_H   = 0
WS_XN  = 8 << 20
WS_Y   = 12 << 20
WS_WT  = 16 << 20
WS_WD  = 20 << 20
WS_U   = 24 << 20
WS_ST  = 28 << 20
WS_DBG = 32 << 20
WS_SIZE = 268435456

def P_to_s(P):
    P = np.asarray(P)
    b = P >> 6; c = (P >> 5) & 1; u = (P >> 4) & 1; m = P & 15
    s1 = 16 * c + 8 * ((m >> 2) & 1) + 4 * (m >> 3) + (m & 3)
    return 64 * s1 + 2 * b + u

def h_slot_f(p, g, e):
    return 32 * p + 16 * (g >> 1) + 8 * (e >> 2) + 4 * (g & 1) + (e & 3)

def unpack_h(raw):
    raw = raw.reshape(128, 48, 4, 16, 8)
    h = np.zeros((S, F), np.uint16)
    RG, p, g, m, e = np.meshgrid(np.arange(128), np.arange(48), np.arange(4), np.arange(16), np.arange(8), indexing='ij')
    h[P_to_s(16 * RG + m), h_slot_f(p, g, e)] = raw
    return h

def bf16_to_f32(u):
    return (u.astype(np.uint32) << 16).view(np.float32)
def f32_to_bf16(x):
    u = np.ascontiguousarray(x, np.float32).view(np.uint32)
    return ((u + 0x7FFF + ((u >> 16) & 1)) >> 16).astype(np.uint16)

def colmap(t, i):
    t = np.asarray(t); i = np.asarray(i)
    return np.where(t < 4, 32 * (t >> 1) + 8 * (i >> 2) + 4 * (t & 1) + (i & 3), 64 + i)

def pack_h(h):
    RG, p, g, m, e = np.meshgrid(np.arange(128), np.arange(48), np.arange(4), np.arange(16), np.arange(8), indexing='ij')
    return np.ascontiguousarray(h[P_to_s(16 * RG + m), h_slot_f(p, g, e)])

def pack_wd(wd):
    cb, p, t, g, i, e = np.meshgrid(np.arange(8), np.arange(48), np.arange(5), np.arange(4), np.arange(16), np.arange(8), indexing='ij')
    return np.ascontiguousarray(wd[h_slot_f(p, g, e), 80 * cb + colmap(t, i)])

def u_slot(k, part):
    k = np.asarray(k)
    return 32 * (10 * part + k % 10) + k // 10

def pack_u(Ur, Ui):
    U = np.zeros((640, 2048), np.uint16)
    sP = P_to_s(np.arange(2048))
    k = np.arange(320)
    U[u_slot(k, 0)] = Ur[sP].T
    U[u_slot(k, 1)] = Ui[sP].T
    return U
def unpack_u(U):
    U = U.reshape(640, 2048)
    sP = P_to_s(np.arange(2048)); k = np.arange(320)
    Ur = np.zeros((2048, 320), np.uint16); Ui = np.zeros((2048, 320), np.uint16)
    Ur[sP] = U[u_slot(k, 0)].T; Ui[sP] = U[u_slot(k, 1)].T
    return Ur, Ui

def drow(r, h):
    return 8 * (r >> 2) + 4 * h + (r & 3)

def pack_y(Yr, Yi):
    k, s2, ks, h, e = np.meshgrid(np.arange(320), np.arange(64), np.arange(2), np.arange(2), np.arange(8), indexing='ij')
    srow = 64 * drow(8 * ks + e, h) + s2
    return np.ascontiguousarray(np.stack([Yr[srow, k], Yi[srow, k]], axis=2))
def unpack_y(raw):
    raw = raw.reshape(320, 64, 2, 2, 2, 8)
    k, s2, ks, h, e = np.meshgrid(np.arange(320), np.arange(64), np.arange(2), np.arange(2), np.arange(8), indexing='ij')
    srow = 64 * drow(8 * ks + e, h) + s2
    Yr = np.zeros((2048, 320), np.uint16); Yi = np.zeros((2048, 320), np.uint16)
    Yr[srow, k] = raw[:, :, 0]; Yi[srow, k] = raw[:, :, 1]
    return Yr, Yi

def pack_wt(wr, wi):
    wr = wr.copy(); wi = wi.copy()
    for c in (0, 320):
        wr[:, c] = f32_to_bf16(bf16_to_f32(wr[:, c]) * 0.5); wi[:, c] = f32_to_bf16(bf16_to_f32(wi[:, c]) * 0.5)
    k, q, h, j1, jj = np.meshgrid(np.arange(321), np.arange(8), np.arange(2), np.arange(32), np.arange(4), indexing='ij')
    j = j1 + 32 * (8 * q + 4 * h + jj)
    return np.ascontiguousarray(wr[j, k].astype(np.uint32) | (wi[j, k].astype(np.uint32) << 16))

def sfft_tables():
    out = []
    h, a, e = np.meshgrid(np.arange(2), np.arange(32), np.arange(8), indexing='ij')
    def frags(n, aa, ks):
        b = 16 * ks + 8 * (e >> 2) + 4 * h + (e & 3)
        ang = 2 * np.pi * ((aa * b) % n) / n
        c = np.cos(ang); sn = np.sin(ang)
        c[np.abs(c) < 1e-12] = 0; sn[np.abs(sn) < 1e-12] = 0
        return [f32_to_bf16(c.astype(np.float32)), f32_to_bf16(sn.astype(np.float32)), f32_to_bf16((-sn).astype(np.float32) + 0.0)]
    for ks in range(2): out += frags(32, a, ks)
    for ta in range(2):
        for ks in range(4): out += frags(64, a + 32 * ta, ks)
    h, a, jj = np.meshgrid(np.arange(2), np.arange(32), np.arange(4), indexing='ij')
    for which in range(2):
        for t in range(2):
            for rg in range(4):
                row = 8 * rg + 4 * h + jj
                n = (32 * t + row) * a if which == 0 else (32 * t + a) * row
                ang = 2 * np.pi * n / 2048
                sc = 1.0 if which == 0 else 1.0 / 2048
                out += [(np.cos(ang) * sc).astype(np.float32), (np.sin(ang) * sc).astype(np.float32)]
    return b''.join(np.ascontiguousarray(x).tobytes() for x in out)
TAB_F32, TAB_F64, TAB_TW1, TAB_TW2, TAB_SIZE = 0, 6144, 30720, 47104, 63488

def data_asm(label, data):
    q = np.frombuffer(data, np.uint64)
    lines = [f'.p2align 8\n.type {label},@object\n{label}:']
    for i in range(0, len(q), 8):
        lines.append('.quad ' + ','.join(('0x%x' % x) if x else '0' for x in q[i:i+8]))
    lines.append(f'.size {label}, {len(data)}')
    return '\n'.join(lines) + '\n'
WS_CS = WS_ST + 65536
```

```python
from asmlib import *
from layout import *

DA = 64
PA, PB = 128, 160
WTR = 192
TB = (32, 44)
TWB = (8, 16)
TMP = 24
VL, VYA, VST = 2, 3, 7
S_WS = 12
def dre(t): return DA + 32 * t
def dim(t): return DA + 32 * t + 16
def fr(base, part, ks): return base + 16 * part + 4 * ks
MF = 'v_mfma_f32_32x32x16_bf16'

def load_tables(A, vm, tab_lds, nwaves, wave_sgpr, label):
    A(f'''s_getpc_b64 s[36:37]
          {label}_pc:
          s_add_u32 s36, s36, {label}-{label}_pc
          s_addc_u32 s37, s37, 0
          s_mov_b32 s38, {TAB_SIZE}
          s_mov_b32 s39, 0x20000
          s_lshl_b32 s28, {wave_sgpr}, 10
          v_lshl_add_u32 v1, v0, 4, s28
          s_add_u32 s28, s28, {tab_lds}''')
    n = -(-62 // nwaves)
    for i in range(n):
        last_partial = (i + 1) * nwaves > 62
        if last_partial:
            A(f's_cmp_ge_u32 {wave_sgpr}, {62 - i * nwaves}\ns_cbranch_scc1 {label}_skip')
        A(f's_add_u32 m0, s28, {1024 * nwaves * i}\ns_mov_b32 s29, {1024 * nwaves * i}\nbuffer_load_dwordx4 v1, s[36:39], s29 offen lds')
        if last_partial:
            A(f'{label}_skip:')
        else:
            vm.issue('tab')

def issue_loads(A, vm, s_k, s_ylds, sc=''):
    A(f'''s_cmp_eq_u32 {s_k}, 320
          s_cselect_b32 s28, 0, {s_k}
          s_lshl_b32 s28, s28, 13
          s_add_u32 s28, s28, {WS_Y}
          v_lshrrev_b32 v1, 4, v0
          v_and_b32 v7, 7, v0
          v_xor_b32 v1, v1, v7
          v_lshlrev_b32 v1, 4, v1
          v_lshrrev_b32 v7, 3, v0
          v_lshl_add_u32 v1, v7, 7, v1
          v_xor_b32 v7, 64, v1''')
    for i in range(8):
        A(f's_add_u32 m0, {s_ylds}, {1024*i}\ns_add_u32 s29, s28, {1024*i}\nbuffer_load_dwordx4 {"v7" if i & 1 else "v1"}, {s(S_WS,4)}, s29 offen lds{sc}')
        vm.issue('y')
    A(f'''s_lshl_b32 s28, {s_k}, 13
          s_add_u32 s28, s28, {WS_WT}
          s_add_u32 s29, s28, 4096
          v_lshlrev_b32 v1, 4, v0''')
    for q in range(8):
        A(f'buffer_load_dwordx4 {v(WTR + 4*q, 4)}, v1, {s(S_WS,4)}, {"s29" if q >= 4 else "s28"} offen offset:{1024 * (q & 3)}{sc}')
        vm.issue('wt')

def cread(buf, off):
    return [f'ds_read_b128 {v(TB[buf] + 4*i, 4)}, {v(VL)} offset:{off + 1024*i}' for i in range(3)]

def stage(A, groups):
    for n, (off, fn) in enumerate(groups):
        b = n & 1
        nxt = cread(b ^ 1, groups[n + 1][0]) if n + 1 < len(groups) else []
        A('s_waitcnt lgkmcnt(0)')
        mf = fn(TB[b], TB[b] + 4, TB[b] + 8)
        for i, m in enumerate(mf):
            A(m)
            if i < len(nxt): A(nxt[i])

def cmul(A, t, rg, src_c, src_s, conj, dst):
    P = lambda r: v(r, 2)
    R, M = dre(t) + 4 * rg, dim(t) + 4 * rg
    o = TMP
    ng = ' neg_lo:[0,1,0] neg_hi:[0,1,0]'
    for q in (0, 2): A(f'v_pk_mul_f32 {P(o+q)}, {P(R+q)}, {P(src_c+q)}')
    for q in (0, 2): A(f'v_pk_mul_f32 {P(o+4+q)}, {P(M+q)}, {P(src_c+q)}')
    for q in (0, 2): A(f'v_pk_fma_f32 {P(o+q)}, {P(M+q)}, {P(src_s+q)}, {P(o+q)}' + (ng if conj else ''))
    for q in (0, 2): A(f'v_pk_fma_f32 {P(o+4+q)}, {P(R+q)}, {P(src_s+q)}, {P(o+4+q)}' + ('' if conj else ng))
    ks = 2 * t + (rg >> 1); d = 2 * (rg & 1)
    for q in (0, 1): A(f'v_cvt_pk_bf16_f32 {v(fr(dst, 0, ks) + d + q)}, {v(o+2*q)}, {v(o+2*q+1)}')
    for q in (0, 1): A(f'v_cvt_pk_bf16_f32 {v(fr(dst, 1, ks) + d + q)}, {v(o+4+2*q)}, {v(o+4+2*q+1)}')

def twiddle(A, tab, conj, dst, first_c):
    def rd(n):
        b = TWB[n & 1]
        return [f'ds_read_b128 {v(b, 4)}, {v(VL)} offset:{tab + 2048*n}', f'ds_read_b128 {v(b+4, 4)}, {v(VL)} offset:{tab + 2048*n + 1024}']
    A.extend(rd(0))
    for n in range(8):
        if n < 7:
            A.extend(rd(n + 1)); A('s_waitcnt lgkmcnt(2)')
        else:
            A.extend(cread(0, first_c)); A('s_waitcnt lgkmcnt(3)')
        if n == 0: A('s_nop 7')
        cmul(A, n >> 2, n & 3, TWB[n & 1], TWB[n & 1] + 4, conj, dst)

def compute(A, vm, s_k, s_ylds, tab_lds, name, sc='', stamp=lambda i: None):
    A(f'''v_lshlrev_b32 {v(VL)}, 4, v0
          v_add_u32 {v(VL)}, {tab_lds}, {v(VL)}
          v_and_b32 v1, 31, v0
          v_lshl_add_u32 v1, v1, 7, {s_ylds}
          v_bfe_u32 v7, v0, 1, 3
          v_lshrrev_b32 v8, 5, v0
          v_xor_b32 v7, v7, v8
          s_cmp_eq_u32 {s_k}, 320
          s_cselect_b32 s28, 4, 0
          v_xor_b32 v8, s28, v7''')
    for ks in range(2):
        A(f'v_xor_b32 v9, {2*ks}, v8\nv_lshl_add_u32 {v(VYA+ks)}, v9, 4, v1')
        A(f'v_xor_b32 v9, {4 + 2*ks}, v7\nv_lshl_add_u32 {v(VYA+2+ks)}, v9, 4, v1')
    A.extend(cread(0, TAB_F32)); A.extend(cread(1, TAB_F32 + 3072))
    for t in range(2):
        for part in range(2):
            for ks in range(2):
                A(f'ds_read_b128 {v(fr(PA, part, 2*t + ks), 4)}, {v(VYA + 2*part + ks)} offset:{4096*t}')
    A(f'''s_cmp_eq_u32 {s_k}, 320
          s_cselect_b32 s28, 0, {s_k}
          s_cselect_b32 s31, {320*4096}, 0
          s_mul_i32 s29, s28, 6554
          s_lshr_b32 s29, s29, 16            ; k / 10
          s_mul_i32 s30, s29, 10
          s_sub_u32 s30, s28, s30
          s_lshl_b32 s30, s30, 5
          s_add_u32 s30, s30, s29
          s_lshl_b32 s30, s30, 12
          s_add_u32 s30, s30, s31
          s_add_u32 s30, s30, {WS_U}
          s_add_u32 s31, s30, {320*4096}
          v_bfe_u32 v1, v0, 1, 4
          v_lshlrev_b32 v1, 7, v1
          v_and_b32 v8, 1, v0
          v_lshl_add_u32 v1, v8, 5, v1
          v_lshrrev_b32 v8, 5, v0
          v_lshl_add_u32 {v(VST)}, v8, 4, v1
          s_cmp_eq_u32 s28, 0
          s_waitcnt lgkmcnt(0)
          s_cbranch_scc0 {name}_cplx''')
    for r in range(16): A(f'v_mov_b32 {v(fr(PA, 1, 0) + r)}, 0')
    A(f's_nop 1\n{name}_cplx:')
    for t in range(2):
        for ks in range(2):
            C, S_, N = TB[ks], TB[ks] + 4, TB[ks] + 8
            yr, yi = fr(PA, 0, 2*t + ks), fr(PA, 1, 2*t + ks)
            c = lambda d: '0' if ks == 0 else v(d, 16)
            A(f'{MF} {v(dre(t), 16)}, {v(yr, 4)}, {v(C, 4)}, {c(dre(t))}')
            A(f'{MF} {v(dim(t), 16)}, {v(yi, 4)}, {v(C, 4)}, {c(dim(t))}')
            A(f'{MF} {v(dre(t), 16)}, {v(yi, 4)}, {v(S_, 4)}, {v(dre(t), 16)}')
            A(f'{MF} {v(dim(t), 16)}, {v(yr, 4)}, {v(N, 4)}, {v(dim(t), 16)}')
    twiddle(A, TAB_TW1, False, PB, TAB_F64)
    stamp(3)
    def g64(src, t, ks, inv):
        def fn(C, S_, N):
            zr, zi = fr(src, 0, ks), fr(src, 1, ks)
            c = lambda d: '0' if ks == 0 else v(d, 16)
            ops = [(dre(t), C, zr, c(dre(t))), (dim(t), C, zi, c(dim(t))),
                   (dre(t), N if inv else S_, zi, v(dre(t), 16)), (dim(t), S_ if inv else N, zr, v(dim(t), 16))]
            if inv: return [f'{MF} {v(d, 16)}, {v(z, 4)}, {v(k, 4)}, {cc}' for d, k, z, cc in ops]
            return [f'{MF} {v(d, 16)}, {v(k, 4)}, {v(z, 4)}, {cc}' for d, k, z, cc in ops]
        return (TAB_F64 + 3072 * (4 * t + ks), fn)
    A('s_nop 1')
    stage(A, [g64(PB, t, ks, False) for t in range(2) for ks in range(4)])
    A.extend(cread(0, TAB_F64))
    A(f's_waitcnt vmcnt({vm.count("wt")})')
    for n in range(8):
        b = TWB[n & 1]
        for jj in range(4):
            A(f'v_lshlrev_b32 {v(b + jj)}, 16, {v(WTR + 4*n + jj)}\nv_and_b32 {v(b + 4 + jj)}, 0xffff0000, {v(WTR + 4*n + jj)}')
        if n == 0: A('s_nop 4')
        cmul(A, n >> 2, n & 3, b, b + 4, True, PA)
    stamp(4)
    A('s_nop 1')
    stage(A, [g64(PA, t, ks, True) for t in range(2) for ks in range(4)])
    twiddle(A, TAB_TW2, True, PB, TAB_F32)
    A.extend(cread(1, TAB_F32 + 3072))
    A('s_waitcnt lgkmcnt(0)')
    stamp(5)
    for t in range(2):
        for ks in range(2):
            C, S_, N = TB[ks], TB[ks] + 4, TB[ks] + 8
            xr, xi = fr(PB, 0, 2*t + ks), fr(PB, 1, 2*t + ks)
            c = lambda d: '0' if ks == 0 else v(d, 16)
            A(f'{MF} {v(dre(t), 16)}, {v(C, 4)}, {v(xr, 4)}, {c(dre(t))}')
            A(f'{MF} {v(dim(t), 16)}, {v(C, 4)}, {v(xi, 4)}, {c(dim(t))}')
            A(f'{MF} {v(dre(t), 16)}, {v(N, 4)}, {v(xi, 4)}, {v(dre(t), 16)}')
            A(f'{MF} {v(dim(t), 16)}, {v(S_, 4)}, {v(xr, 4)}, {v(dim(t), 16)}')
    def pack_store(t, part):
        d = dre(t) if part == 0 else dim(t)
        for c in range(2):
            o = PA + 16 * part + 8 * t + 4 * c
            for q in range(4): A(f'v_cvt_pk_bf16_f32 {v(o + q)}, {v(d + 8*c + 2*q)}, {v(d + 8*c + 2*q + 1)}')
            A(f'buffer_store_dwordx4 {v(o, 4)}, {v(VST)}, {s(S_WS,4)}, {"s31" if part else "s30"} offen offset:{2048*t + 64*c}{sc}')
    A('s_nop 3')
    pack_store(0, 0)
    A('s_nop 1')
    pack_store(1, 0)
    A(f's_cmp_eq_u32 s28, 0\ns_cbranch_scc1 {name}_noim')
    pack_store(0, 1); pack_store(1, 1)
    A(f'{name}_noim:')
```

```python
import sys
sys.path.insert(0, 'dev')
from asmlib import *
from layout import *
import common, f1, g1, g2, sfft

HEADER = open('recurrent_scan__spectral_gfnet__glu_gated_geglu__prompt.s.ref').read().split('; Override launch')[0]

def k_f1(prof):
    A = Asm(); vm = VM()
    st = lambda i: common.stamp(A, i, prof)
    common.stamp_rt(A, 0, prof); st(1)
    common.entry(A)
    A('s_cmp_ge_u32 s2, 64\ns_cbranch_scc1 f1_done\ns_mov_b32 s17, s2\ns_waitcnt lgkmcnt(0)')
    f1.issue(A, vm); st(2)
    if prof: A('s_waitcnt lgkmcnt(0)')
    f1.layernorm(A, vm); st(3)
    f1.dft(A, vm); st(4)
    f1.side(A); st(5)
    if prof: A('s_waitcnt vmcnt(0)')
    st(6); common.stamp_rt(A, 7, prof); common.stamp_flush(A, prof, 0)
    A.block('f1_done'); A('s_endpgm')
    return khead('f1_kernel') + A.text() + kdesc('f1_kernel', 224)

def k_g1(prof):
    A = Asm()
    st = lambda i: common.stamp(A, i, prof)
    common.stamp_rt(A, 0, prof); st(1)
    common.entry(A)
    A('''s_cmp_ge_u32 s2, 192
         s_cbranch_scc1 g1_done
         s_and_b32 s28, s2, 7
         s_lshr_b32 s29, s2, 3
         s_mul_i32 s30, s29, 43
         s_lshr_b32 s30, s30, 7
         s_mul_i32 s31, s30, 3
         s_sub_u32 s31, s29, s31
         s_lshr_b32 s17, s28, 2
         s_lshl_b32 s17, s17, 3
         s_add_u32 s17, s17, s30
         s_and_b32 s18, s28, 3
         s_mul_i32 s18, s18, 3
         s_add_u32 s18, s18, s31
         s_waitcnt lgkmcnt(0)''')
    st(2)
    g1.prologue(A, 0); st(3)
    g1.mainloop(A, 'g1'); st(4)
    g1.ext_apply(A)
    g1.epilogue(A); st(5)
    if prof: A('s_waitcnt vmcnt(0)')
    st(6); common.stamp_rt(A, 7, prof); common.stamp_flush(A, prof, 1)
    A.block('g1_done'); A('s_endpgm')
    names = [n for n, _ in A.blocks]
    A.check([names[0], 'g1_loop', 'g1_loop', 'g1_epi'])
    return khead('g1_kernel') + A.text() + kdesc('g1_kernel', 256)

def k_sf(prof):
    A = Asm(); vm = VM()
    st = lambda i: common.stamp(A, i, prof)
    common.stamp_rt(A, 0, prof); st(1)
    common.entry(A)
    A(f'''s_cmp_ge_u32 s2, 81
         s_cbranch_scc1 sf_done
         s_lshl_b32 s17, s2, 2
         s_add_u32 s17, s17, s16
         s_min_u32 s17, s17, 320
         s_lshl_b32 s18, s16, 13
         s_add_u32 s18, s18, {TAB_SIZE}
         s_waitcnt lgkmcnt(0)
         s_mov_b32 s12, s58\ns_mov_b32 s13, s59\ns_mov_b32 s14, {WS_SIZE}\ns_mov_b32 s15, 0x20000''')
    sfft.load_tables(A, vm, 0, 4, 's16', 'sf_tab')
    sfft.issue_loads(A, vm, 's17', 's18')
    A(f's_waitcnt vmcnt({vm.count("y", "tab")})\ns_barrier'); st(2)
    sfft.compute(A, vm, 's17', 's18', 0, 'sf', stamp=st); st(6)
    if prof: A('s_waitcnt vmcnt(0)')
    common.stamp_rt(A, 7, prof); common.stamp_flush(A, prof, 2)
    A.block('sf_done'); A('s_endpgm')
    return khead('sf_kernel') + A.text() + data_asm('sf_tab', sfft_tables()) + kdesc('sf_kernel', 224)

def k_g2(prof):
    A = Asm()
    st = lambda i: common.stamp(A, i, prof)
    common.stamp_rt(A, 0, prof); st(1)
    common.entry(A)
    A('''s_cmp_ge_u32 s2, 256
         s_cbranch_scc1 g2_done
         s_and_b32 s28, s2, 7
         s_lshr_b32 s29, s2, 3
         s_and_b32 s18, s29, 7
         s_lshr_b32 s29, s29, 3
         s_lshl_b32 s17, s28, 2
         s_add_u32 s17, s17, s29
         s_waitcnt lgkmcnt(0)''')
    st(2)
    g2.body(A, st)
    if prof: A('s_waitcnt vmcnt(0)')
    st(6); common.stamp_rt(A, 7, prof); common.stamp_flush(A, prof, 3)
    A.block('g2_done'); A('s_endpgm')
    return khead('g2_kernel') + A.text() + kdesc('g2_kernel', 192)

def k_empty(name):
    return khead(name) + '    s_endpgm\n' + kdesc(name, 8, 16)

def build(prof=False, extra=0):
    L = ['; @launch kernel=f1_kernel grid=(64,1,1) block=(512,1,1) lds=131072',
         '; @launch kernel=g1_kernel grid=(192,1,1) block=(256,1,1) lds=147456',
         '; @launch kernel=sf_kernel grid=(81,1,1) block=(256,1,1) lds=98304',
         '; @launch kernel=g2_kernel grid=(256,1,1) block=(256,1,1) lds=163840']
    L += ['; @launch kernel=empty_kernel grid=(256,1,1) block=(256,1,1) lds=0'] * extra
    return (HEADER + '\n'.join(L) + '\n.amdgcn_target "amdgcn-amd-amdhsa--gfx950"\n' + k_f1(prof) + k_g1(prof) + k_sf(prof) + k_g2(prof)
            + (k_empty('empty_kernel') if extra else ''))

if False:
    open('v1.s', 'w').write(build())
    open('v1_e2.s', 'w').write(build(extra=2))
    open('v1_prof.s', 'w').write(build(prof=True))
    open('recurrent_scan__spectral_gfnet__glu_gated_geglu__prompt.s', 'w').write(build())
```

```python
from asmlib import *
from layout import *

def AGAIN(name):
    return f's_sub_u32 s97, s97, 1\ns_cmp_gt_i32 s97, 0\ns_cbranch_scc1 {name}'

def entry(A):
    A('''s_load_dwordx16 s[40:55], s[0:1], 0
         s_load_dwordx4 s[56:59], s[0:1], 64
         v_lshrrev_b32 v1, 6, v0
         v_and_b32 v0, 63, v0
         v_readfirstlane_b32 s16, v1
         s_mov_b32 s97, 0x8000''')

NSTAMP = 16
def stamp(A, i, on):
    if on: A(f's_memtime s[{64+2*i}:{65+2*i}]')
def stamp_rt(A, i, on):
    if on: A(f's_memrealtime s[{64+2*i}:{65+2*i}]')
def stamp_flush(A, on, kidx=0):
    if not on: return
    A(f'''s_waitcnt lgkmcnt(0)
          s_lshl_b32 s60, s2, 3
          s_add_u32 s60, s60, s16
          s_lshl_b32 s60, s60, 6
          s_add_u32 s60, s60, {WS_DBG + kidx * 131072 * 2}
          s_add_u32 s62, s58, s60
          s_addc_u32 s63, s59, 0
          v_mov_b32 v1, 0''')
    for i in range(NSTAMP):
        A(f'v_mov_b32 v2, s{64+2*i}\nglobal_store_dword v1, v2, s[62:63] offset:{4*i}')

def sw_arrive(A, vaddr_own, gen, vtmp):
    A(f'v_mov_b32 {v(vtmp)}, {gen}\nds_write_b32 {v(vaddr_own)}, {v(vtmp)}')
def sw_wait(A, name, vaddr_all, gen, vt, n=4, stmp='s28'):
    A(f'{name}:')
    if n == 4:
        A(f'''ds_read_b128 {v(vt, 4)}, {v(vaddr_all)}
              s_waitcnt lgkmcnt(0)
              v_min3_u32 {v(vt)}, {v(vt)}, {v(vt+1)}, {v(vt+2)}
              v_min_u32 {v(vt)}, {v(vt)}, {v(vt+3)}''')
    else:
        A(f'''ds_read_b64 {v(vt, 2)}, {v(vaddr_all)}
              s_waitcnt lgkmcnt(0)
              v_min_u32 {v(vt)}, {v(vt)}, {v(vt+1)}''')
    A(f'''s_nop 0
          v_readfirstlane_b32 {stmp}, {v(vt)}
          s_cmp_ge_u32 {stmp}, {gen}
          s_cbranch_scc1 {name}_out
          {AGAIN(name)}
          {name}_out:''')

def stamp_init(A, on):
    if on:
        for i in range(1, NSTAMP - 1): A(f's_mov_b32 s{64+2*i}, 0')

def poll_lines(A, name, srd, soff, vaddr, vexp, vtmp, sleep):
    A(f'''{name}:
          buffer_load_dword {v(vtmp)}, {v(vaddr)}, {srd}, {soff} offen sc1
          s_waitcnt vmcnt(0)
          v_cmp_eq_u32 vcc, {v(vtmp)}, {v(vexp)}
          s_cmp_eq_u64 vcc, -1
          s_cbranch_scc1 {name}_ok
          s_sleep {sleep}
          {AGAIN(name)}
          {name}_ok:''')

def signal8(A, srd, soff, stride, v1, v2):
    A(f'''v_mul_u32_u24 {v(v1)}, {stride}, v0
          v_mov_b32 {v(v2)}, 1
          s_mov_b64 exec, 0xff
          buffer_atomic_add {v(v2)}, {v(v1)}, {srd}, {soff} offen sc1
          s_mov_b64 exec, -1''')

def wait_cleared(A, name, va, vb):
    A(f'''v_mov_b32 {v(va)}, 0
          {name}:
          global_load_dword {v(vb)}, {v(va)}, s[56:57] offset:128 sc1
          s_waitcnt vmcnt(0)
          v_readfirstlane_b32 s28, {v(vb)}
          s_cmp_lg_u32 s28, 0
          s_cbranch_scc1 {name}_ok
          s_sleep 4
          {AGAIN(name)}
          {name}_ok:''')
```

```python
from asmlib import *
from layout import *
import math, common
MF32 = 'v_mfma_f32_32x32x16_bf16'
MF16 = 'v_mfma_f32_16x16x32_bf16'
L_X, L_A, L_WD, L_WF, L_CS, L_FL, L_YT = 0, 40960, 0, 81920, 131072, 135168, 136192
S_F = 17
SX, SWS, SWR, SWI, SWD, SCS = 4, 12, 8, 20, 24, 32
WTL = 160
CSL = 64
ACC = 64
VWTA = 154
ROW = (128, 136); BF = (144, 148); AFR = (40, 48, 56)

def issue_addr(A):
    A(f'''s_mul_i32 s38, s16, {4*81920}
          s_mul_i32 s29, s17, 1280
          s_add_u32 s38, s38, s29
          s_mul_i32 s39, s16, 5120
          s_mov_b32 s30, 80640''')
    for n in range(5):
        A(f'''v_add_u32 v1, {64*n}, v0
              v_mul_u32_u24 v2, 205, v1
              v_lshrrev_b32 v2, 14, v2
              v_lshlrev_b32 v1, 4, v1
              v_mad_u32_u24 {v(24 + n)}, v2, s30, v1''')

def issue_x(A, vm):
    A(f's_mov_b32 s4, s40\ns_mov_b32 s5, s41\ns_mov_b32 s6, {S*D*2}\ns_mov_b32 s7, 0x20000')
    for n in range(5):
        A(f's_add_u32 m0, s39, {L_X + 1024*n}\ns_nop 0\nbuffer_load_dwordx4 {v(24 + n)}, s[4:7], s38 offen lds')
        vm.issue('x')
    A(f'v_lshlrev_b32 v1, 2, v0\nv_add_u32 v1, {L_FL}, v1\nv_mov_b32 v2, 0\nds_write_b32 v1, v2')

def stats_store(A, vm, sc=''):
    A(f'''v_and_b32 v8, 31, v0
          v_lshlrev_b32 v9, 3, v8
          v_add_u32 v9, {L_FL + 256}, v9
          ds_read_b64 v[10:11], v9
          v_and_b32 v9, 3, v8
          v_bfe_u32 v12, v8, 2, 1
          v_lshl_add_u32 v9, v12, 3, v9
          v_bfe_u32 v12, v8, 3, 1
          v_lshl_add_u32 v9, v12, 2, v9
          v_lshrrev_b32 v12, 4, v8
          v_lshl_add_u32 v9, v12, 5, v9
          v_lshlrev_b32 v9, 3, v9
          s_lshr_b32 s28, s17, 1
          s_lshl_b32 s28, s28, 6
          s_and_b32 s29, s17, 1
          s_lshl_b32 s29, s29, 4
          s_add_u32 s28, s28, s29
          s_lshl_b32 s28, s28, 3
          s_add_u32 s28, s28, {WS_ST}
          s_cmp_eq_u32 s16, 7
          s_cselect_b32 s28, s28, 0x40000000
          s_waitcnt lgkmcnt(0)
          buffer_store_dwordx2 v[10:11], v9, {s(SWS,4)}, s28 offen{sc}''')
    vm.issue('st')

def side_issue(A, vm):
    A(f'''s_sub_u32 s18, s16, 4
          s_bitcmp1_b32 s2, 2
          s_cselect_b32 s32, s50, s48
          s_cselect_b32 s33, s51, s49
          s_cmp_lt_u32 s2, 48
          s_cselect_b32 s34, {D*F*2}, 0
          s_mov_b32 s35, 0x20000
          s_and_b32 s19, s2, 3
          s_mul_i32 s19, s19, 6
          s_lshr_b32 s28, s2, 3
          s_add_u32 s19, s19, s28
          s_and_b32 s61, s2, 7
          s_mul_i32 s61, s61, 6
          s_add_u32 s61, s61, s28
          s_sub_u32 s61, s61, 2
          v_lshrrev_b32 v1, 3, v0
          v_mul_u32_u24 v1, 3072, v1
          v_and_b32 v2, 7, v0
          v_lshl_add_u32 v1, v2, 4, v1
          s_mul_i32 s28, s18, {8*3072}
          s_lshl_b32 s29, s19, 7
          s_add_u32 s28, s28, s29''')
    for n in range(20):
        A(f'buffer_load_dwordx4 {v(CSL + 4*n, 4)}, v1, {s(SCS,4)}, s28 offen\ns_add_u32 s28, s28, {32*3072}'); vm.issue('cs')

def wd_issue(A, vm):
    A(f'''s_mov_b32 s24, s52\ns_mov_b32 s25, s53\ns_mov_b32 s27, 0x20000
          s_cmp_ge_u32 s2, 16
          s_cselect_b32 s26, {F*D*2}, 0
          s_cselect_b32 s28, s61, 0
          v_lshlrev_b32 v1, 4, v0
          s_mul_i32 s28, s28, 40960
          s_mul_i32 s29, s18, 10240
          s_add_u32 s28, s28, s29''')
    for n in range(10):
        A(f's_add_u32 m0, s29, {L_WD + 1024*n}\ns_add_u32 s30, s28, {1024*n}\nbuffer_load_dwordx4 v1, {s(SWD,4)}, s30 offen lds'); vm.issue('wd')

def wt_issue(A, vm):
    A(f'''s_cmp_lt_u32 s18, 2
          s_cselect_b32 s8, s42, s44
          s_cselect_b32 s9, s43, s45
          s_mov_b32 s10, {S*321*2}
          s_mov_b32 s11, 0x20000
          s_and_b32 s28, s17, 3
          s_mul_i32 s28, s28, 5136
          s_lshr_b32 s29, s17, 2
          s_lshl_b32 s29, s29, 1
          s_and_b32 s30, s18, 1
          s_add_u32 s29, s29, s30
          s_mul_i32 s29, s29, {2*20544}
          s_add_u32 s28, s28, s29
          s_mul_i32 s29, s18, {2*6144}
          s_add_u32 s29, s29, {L_WF}
          v_lshlrev_b32 v1, 4, v0
          v_lshlrev_b32 v2, 28, v0
          v_lshrrev_b32 v3, 4, v0
          v_lshl_or_b32 v2, v3, 28, v2''')
    for r in range(2):
        for i in range(6):
            A(f's_add_u32 m0, s29, {6144*r + 1024*i}\ns_add_u32 s30, s28, {20544*r + 1024*i}\nbuffer_load_dwordx4 {"v1" if i < 5 else "v2"}, {s(SWR,4)}, s30 offen lds'); vm.issue('wf')

def layernorm(A, vm, sc='', pre_barrier=None):
    X, T = 64, 88
    A(f'''v_lshrrev_b32 v1, 4, v0
          v_mul_u32_u24 v1, 1280, v1
          v_and_b32 v2, 15, v0
          v_mul_u32_u24 v3, 80, v2
          s_mul_i32 s29, s16, 5120
          v_add3_u32 v1, v1, v3, s29
          s_mov_b32 s28, 0x3f803f80
          v_mov_b32 v4, 0\nv_mov_b32 v5, 0\nv_mov_b32 v6, 0\nv_mov_b32 v7, 0
          s_waitcnt vmcnt({vm.count("x")})''')
    for c in range(5): A(f'ds_read_b128 {v(X + 4*c, 4)}, v1 offset:{L_X + 16*c}')
    A(f'''v_lshrrev_b32 v3, 3, v2
          v_mul_u32_u24 v3, 20480, v3
          v_bfe_u32 v8, v0, 2, 1
          v_lshl_add_u32 v3, v8, 9, v3
          v_lshrrev_b32 v8, 4, v0
          s_lshl_b32 s29, s16, 2
          v_add_u32 v8, s29, v8               ; s1
          v_lshl_add_u32 v3, v8, 4, v3
          v_and_b32 v9, 3, v0
          v_lshl_add_u32 v3, v9, 2, v3
          v_add_u32 v3, {L_A}, v3''')
    for c in range(5):
        A(f's_waitcnt lgkmcnt({4 - c})')
        for q in range(4):
            r = X + 4 * c + q
            A(f'v_dot2_f32_bf16 {v(4 + (q & 1))}, {v(r)}, s28, {v(4 + (q & 1))}')
            A(f'v_dot2_f32_bf16 {v(6 + (q & 1))}, {v(r)}, {v(r)}, {v(6 + (q & 1))}')
    for c in range(20):
        A(f'v_lshlrev_b32 {v(T + 2*c)}, 16, {v(X + c)}\nv_and_b32 {v(T + 2*c + 1)}, 0xffff0000, {v(X + c)}')
    A('v_add_f32 v4, v4, v5\nv_add_f32 v6, v6, v7\ns_nop 0')
    for n in (8, 4, 2, 1):
        A(f'v_add_f32_dpp v4, v4, v4 row_ror:{n} row_mask:0xf bank_mask:0xf\nv_add_f32_dpp v6, v6, v6 row_ror:{n} row_mask:0xf bank_mask:0xf\ns_nop 0')
    A(f'''s_mov_b32 s28, {fhex(1.0/640)}
          v_mul_f32 v4, s28, v4               ; mean
          v_mul_f32 v6, s28, v6
          v_fma_f32 v6, -v4, v4, v6
          v_max_f32 v6, 0, v6                 ; variance
          v_cvt_pk_bf16_f32 v5, v4, v6
          v_and_b32 v6, 0xffff0000, v5
          v_add_f32 v6, {fhex(1e-5)}, v6
          v_cvt_pk_bf16_f32 v6, v6, v6
          v_lshlrev_b32 v6, 16, v6
          v_sqrt_f32 v6, v6
          v_lshlrev_b32 v4, 16, v5
          v_cvt_pk_bf16_f32 v6, v6, v6
          v_lshlrev_b32 v6, 16, v6
          v_rcp_f32 v11, v6
          v_cvt_pk_bf16_f32 v10, -v4, -v4
          v_mul_f32 v6, v4, v11
          v_mov_b32 v4, v11''')
    A(f'v_lshlrev_b32 v9, 3, v8\nv_add_u32 v9, {L_FL + 256}, v9\nds_write_b64 v9, v[10:11]')
    for c in range(20):
        A(f'v_pk_fma_f32 {v(T + 2*c, 2)}, {v(T + 2*c, 2)}, v[4:5], v[6:7] op_sel_hi:[1,0,0] neg_lo:[0,0,1] neg_hi:[0,0,1]')
    for j in range(20):
        A(f'v_cvt_pk_bf16_f32 {v(X + j)}, {v(T + j)}, {v(T + 20 + j)}')
        A(f'ds_write_b32 v3, {v(X + j)} offset:{1024*j}')
    if pre_barrier: pre_barrier()
    A('s_waitcnt lgkmcnt(0)\ns_barrier')

def dft(A, sc=''):
    K, PH, AMP, K1, K20, T0, T1, H, VA = 4, 5, 6, 7, 8, 9, 10, 11, 12
    AL, BE, GA, SG = 13, 14, 15, 16
    A1, A2 = 18, 20
    VCH, VYR, VYW = 17, 3, 22
    A(f'''s_mov_b32 s36, s16
          v_lshlrev_b32 {v(VA)}, 4, v0
          v_add_u32 {v(VA)}, {L_A}, {v(VA)}
          s_mov_b32 s37, {fhex(1.0/640)}
          v_lshrrev_b32 v1, 3, v0
          v_xor_b32 v1, v1, v0
          v_and_b32 v1, 3, v1
          v_lshlrev_b32 {v(VCH)}, 4, v1
          s_lshl_b32 s28, s16, 11
          s_add_u32 s28, s28, {L_YT}
          v_lshl_add_u32 {v(VYR)}, v0, 4, s28
          v_bfe_u32 v1, v0, 1, 2
          v_lshrrev_b32 v2, 5, v0
          v_xor_b32 v1, v1, v2
          v_lshlrev_b32 v1, 4, v1
          v_and_b32 v2, 31, v0
          v_lshl_add_u32 v1, v2, 6, v1
          v_add_u32 {v(VYW)}, s28, v1
          v_xor_b32 {v(VYW+1)}, 32, {v(VYW)}''')
    A.block('f1_unit')
    def aread(buf, j):
        return [f'ds_read_b128 {v(AFR[buf] + 4*q, 4)}, {v(VA)} offset:{20480*q + 1024*j}' for q in range(2)]
    A.extend(aread(0, 0)); A.extend(aread(1, 1))
    A(f'''s_lshr_b32 s28, s36, 1
          s_lshl_b32 s28, s28, 5              ; 32 kt
          s_and_b32 s29, s36, 1               ; cs
          s_mul_i32 s30, s29, 0x3e800000
          v_and_b32 {v(T0)}, 31, v0
          v_add_u32 {v(T0)}, s28, {v(T0)}
          v_cvt_f32_u32 {v(K)}, {v(T0)}
          v_and_b32 {v(T1)}, 1, v0
          v_lshlrev_b32 {v(T1)}, 31, {v(T1)}
          v_xor_b32 {v(SG)}, 1.0, {v(T1)}
          s_lshl_b32 s31, s29, 31
          s_xor_b32 s31, s31, 1.0             ; sigma
          v_cmp_gt_u32 vcc, s29, {v(T0)}
          v_mov_b32 {v(PH)}, s30
          v_mov_b32 {v(AMP)}, 1.0
          v_mov_b32 {v(AL)}, 1.0
          v_mov_b32 {v(BE)}, s31
          v_xor_b32 {v(GA)}, 0x80000000, {v(BE)}
          v_mov_b32 {v(T1)}, {fhex(160.0)}
          v_cndmask_b32 {v(K)}, {v(K)}, {v(T1)}, vcc
          v_mov_b32 {v(T1)}, {fhex(0.125)}
          v_cndmask_b32 {v(PH)}, {v(PH)}, {v(T1)}, vcc
          v_mov_b32 {v(T1)}, {fhex(math.sqrt(2.0))}
          v_cndmask_b32 {v(AMP)}, {v(AMP)}, {v(T1)}, vcc
          v_cndmask_b32 {v(GA)}, {v(GA)}, {v(AL)}, vcc
          v_cndmask_b32 {v(AL)}, {v(AL)}, 0, vcc
          v_cndmask_b32 {v(BE)}, {v(BE)}, 0, vcc
          v_lshrrev_b32 {v(H)}, 5, v0
          v_mul_u32_u24 {v(H)}, 160, {v(H)}
          v_cvt_f32_u32 {v(H)}, {v(H)}''')
    r0, r1 = ROW
    A(f'''v_mul_f32 {v(r0)}, {v(H)}, {v(K)}
          v_mul_f32 {v(K20)}, {fhex(1.0/32)}, {v(K)}
          v_mul_f32 {v(T1)}, s37, {v(r0)}
          v_mul_f32 {v(K1)}, s37, {v(K)}
          v_floor_f32 {v(T1)}, {v(T1)}
          v_fract_f32 {v(K20)}, {v(K20)}
          v_fmac_f32 {v(r0)}, {fhex(-640.0)}, {v(T1)}
          v_fma_f32 {v(r0)}, {v(r0)}, s37, {v(PH)}
          v_add_f32 {v(r1)}, {v(r0)}, {v(K1)}
          v_add_f32 {v(r0+1)}, {v(r0)}, {v(K20)}
          v_add_f32 {v(r1+1)}, {v(r1)}, {v(K20)}''')
    for r in (K20, r0, r0 + 1, r1, r1 + 1, K1): A(f'v_cos_f32 {v(r)}, {v(r)}')
    A(f'v_add_f32 {v(K20)}, {v(K20)}, {v(K20)}')
    for r in (r0, r0 + 1, r1, r1 + 1): A(f'v_mul_f32 {v(r)}, {v(AMP)}, {v(r)}')
    A(f'v_add_f32 {v(K1)}, {v(K1)}, {v(K1)}')
    for e in range(2, 8):
        for j in range(2):
            A(f'v_fma_f32 {v(ROW[j]+e)}, {v(K20)}, {v(ROW[j]+e-1)}, -{v(ROW[j]+e-2)}')
    def cvt(j): return [f'v_cvt_pk_bf16_f32 {v(BF[j&1] + q)}, {v(ROW[j&1] + 2*q)}, {v(ROW[j&1] + 2*q + 1)}' for q in range(4)]
    def adv(j): return [f'v_fma_f32 {v(ROW[j&1]+e)}, {v(K1)}, {v(ROW[(j-1)&1]+e)}, -{v(ROW[j&1]+e)}' for e in range(8)]
    A.extend(cvt(0))
    A(f'''v_lshrrev_b32 {v(T0)}, 2, v0
          v_add_u32 {v(T0)}, s28, {v(T0)}
          v_cmp_eq_u32 vcc, 0, {v(T0)}
          v_mul_u32_u24 {v(T0)}, {YS}, {v(T0)}
          s_lshl_b32 s30, s29, 6
          v_add_u32 {v(A1)}, s30, {v(T0)}
          v_add_u32 {v(A1+1)}, {16*YS}, {v(A1)}
          s_add_u32 s30, s30, {320*YS}
          v_sub_u32 {v(A2)}, s30, {v(T0)}
          v_subrev_u32 {v(A2+1)}, {16*YS}, {v(A2)}
          s_mul_i32 s30, s29, {160*YS}
          v_mov_b32 {v(T0)}, s30
          v_cndmask_b32 {v(A1)}, {v(A1)}, {v(T0)}, vcc
          v_add_u32 {v(T0)}, 64, {v(T0)}
          v_cndmask_b32 {v(A2)}, {v(A2)}, {v(T0)}, vcc
          v_add_u32 {v(A1)}, {v(A1)}, {v(VCH)}
          v_add_u32 {v(A1+1)}, {v(A1+1)}, {v(VCH)}
          v_add_u32 {v(A2)}, {v(A2)}, {v(VCH)}
          v_add_u32 {v(A2+1)}, {v(A2+1)}, {v(VCH)}
          s_lshl_b32 s30, s17, 7
          s_add_u32 s30, s30, {WS_Y}''')
    for j in range(20):
        b = j & 1
        nxt = aread((j + 2) % 3, j + 2) if j < 18 else []
        fill = (adv(j + 1) if 1 <= j < 19 else []) + (cvt(j + 1) if j < 19 else [])
        A(f's_waitcnt lgkmcnt({2 if j < 19 else 0})')
        for q in range(2):
            d = ACC + 32 * q + 16 * b
            A(f'{MF32} {v(d, 16)}, {v(AFR[j % 3] + 4*q, 4)}, {v(BF[b], 4)}, {"0" if j < 2 else v(d, 16)}')
            if nxt: A(nxt[q])
            A.extend(fill[q * len(fill) // 2:(q + 1) * len(fill) // 2])
        if j < 19: A('s_nop 0')
    E0, O0, E1, O1 = ACC, ACC + 16, ACC + 32, ACC + 48
    A('s_nop 4')
    for r in range(16): A(f'v_fmac_f32 {v(E0+r)}, {v(SG)}, {v(E1+r)}')
    for r in range(16): A(f'v_fmac_f32 {v(O0+r)}, {v(SG)}, {v(O1+r)}')
    for r in range(16): A(f'v_mul_f32 {v(E1+r)}, {v(BE)}, {v(E0+r)}')
    for r in range(16): A(f'v_fmac_f32 {v(E0+r)}, {v(AL)}, {v(O0+r)}')
    for r in range(16): A(f'v_fmac_f32 {v(E1+r)}, {v(GA)}, {v(O0+r)}')
    for n, (src, adr) in enumerate(((E0, A1), (E1, A2))):
        o = 24 + 8 * n; g = 56 + 0 * n
        for q in range(8): A(f'v_cvt_pk_bf16_f32 {v(o + q)}, {v(src + 2*q)}, {v(src + 2*q + 1)}')
        if n == 1:
            A('s_waitcnt lgkmcnt(0)')
            A(f'buffer_store_dwordx4 {v(152, 4)}, {v(A1)}, {s(SWS,4)}, s30 offen{sc}')
            A(f'buffer_store_dwordx4 {v(156, 4)}, {v(A1 + 1)}, {s(SWS,4)}, s30 offen{sc}')
        A(f'ds_write_b128 {v(VYW)}, {v(o, 4)}\nds_write_b128 {v(VYW+1)}, {v(o + 4, 4)}')
        A(f'ds_read_b128 {v(152 + 8*n, 4)}, {v(VYR)}\nds_read_b128 {v(156 + 8*n, 4)}, {v(VYR)} offset:1024')
    A('s_waitcnt lgkmcnt(0)')
    A(f'buffer_store_dwordx4 {v(160, 4)}, {v(A2)}, {s(SWS,4)}, s30 offen{sc}')
    A(f'buffer_store_dwordx4 {v(164, 4)}, {v(A2 + 1)}, {s(SWS,4)}, s30 offen{sc}')
    A('s_add_u32 s36, s36, 4\ns_cmp_lt_u32 s36, 10\ns_cbranch_scc1 f1_unit')
    A.block('f1_unit_end')

SL, SH, SE, SL0 = 224, 228, 232, 236
def colsum_part(A, vm):
    A(f'''v_and_b32 v1, 1, v0
          v_lshlrev_b32 v1, 4, v1
          v_lshlrev_b32 v1, v1, 0x3f80        ; value in the low or high half
          v_bfe_u32 v2, v0, 1, 2              ; register index
          v_bfe_u32 v3, v0, 3, 1              ; n >> 3
          v_lshrrev_b32 v4, 4, v0             ; g''' .replace('v_lshlrev_b32 v1, v1, 0x3f80', 'v_mov_b32 v5, 0x3f80\nv_lshlrev_b32 v1, v1, v5'))
    for q in range(4):
        A(f'v_cmp_eq_u32 vcc, {q}, v2\ns_nop 1\nv_cndmask_b32 {v(SE + q)}, 0, v1, vcc')
    A('v_cmp_eq_u32 vcc, 0, v3\ns_nop 1')
    for q in range(4): A(f'v_cndmask_b32 {v(SE + q)}, 0, {v(SE + q)}, vcc')
    A(f's_nop 0\ns_waitcnt vmcnt({vm.count("cs")})')
    for n in range(20):
        A(f'{MF16} v[40:43], {v(CSL + 4*n, 4)}, {v(SE, 4)}, {"0" if n == 0 else "v[40:43]"}')
    A(f'''v_lshlrev_b32 v7, 4, v0
          s_lshl_b32 s28, s18, 10
          s_add_u32 s28, s28, {L_CS}
          v_add_u32 v7, s28, v7
          s_lshl_b32 s28, s18, 2
          s_add_u32 s28, s28, {L_FL}
          v_mov_b32 v8, s28
          v_mov_b32 v9, {L_FL}
          ds_write_b128 v7, v[40:43]
          s_waitcnt lgkmcnt(0)''')
    common.sw_arrive(A, 8, 1, 10)
    common.sw_wait(A, 'f1_sw', 9, 1, 12)

def side_sync(A, vm):
    A(f's_waitcnt vmcnt({vm.count("wd", "wf")})')
    A(f's_lshl_b32 s28, s18, 2\ns_add_u32 s28, s28, {L_FL}\nv_mov_b32 v8, s28\nv_mov_b32 v9, {L_FL}')
    common.sw_arrive(A, 8, 2, 10)
    common.sw_wait(A, 'f1_sw2', 9, 2, 12)

def wt_job(A, vm, sc=''):
    A(f'''v_lshrrev_b32 v1, 3, v0
          s_lshl_b32 s28, s18, 3
          v_add_u32 v1, s28, v1
          v_and_b32 v6, 7, v0
          v_mul_u32_u24 v2, 642, v6
          v_lshl_add_u32 v2, v1, 1, v2
          v_add_u32 v2, {L_WF}, v2
          v_lshlrev_b32 v6, 4, v6
          v_mul_u32_u24 v3, {YS}, v1
          v_add_u32 v6, v6, v3
          v_cmp_eq_u32 vcc, 0, v1
          v_mov_b32 v3, 0x40000000
          s_lshr_b32 s28, s17, 2
          s_lshl_b32 s28, s28, 9
          s_and_b32 s29, s17, 3
          s_lshl_b32 s29, s29, 7
          s_add_u32 s28, s28, s29
          s_add_u32 s30, s28, {WS_WT}
          v_cndmask_b32 v7, v3, v6, vcc''')
    def rd(r):
        b = 16 + 8 * (r & 1)
        return [f'ds_read_u16 {v(b + 4*p + jj)}, v2 offset:{4*6144*p + 6144*jj + 64*r}' for p in range(2) for jj in range(4)]
    A.extend(rd(0))
    for r in range(11):
        b = 16 + 8 * (r & 1); o = 32 + 4 * (r & 3)
        if r < 10:
            nx = rd(r + 1); A.extend(nx[:7]); A('s_waitcnt lgkmcnt(7)')
        else:
            nx = []; A('s_waitcnt lgkmcnt(0)')
        for jj in range(4): A(f'v_lshl_or_b32 {v(o + jj)}, {v(b + 4 + jj)}, 16, {v(b + jj)}')
        A.extend(nx[7:])
        A(f'buffer_store_dwordx4 {v(o, 4)}, {"v6" if r < 10 else "v7"}, {s(SWS,4)}, s30 offen{sc}'); vm.issue('wts')
        A(f's_add_u32 s30, s30, {32*YS}')

def wd_job(A, vm, sc=''):
    A(f'''v_lshrrev_b32 v1, 5, v0
          v_lshlrev_b32 v1, 4, v1
          v_bfe_u32 v2, v0, 4, 1
          v_lshl_add_u32 v1, v2, 2, v1
          v_bfe_u32 v2, v0, 2, 2
          v_add_u32 v1, v1, v2
          v_mul_u32_u24 v1, 1280, v1
          s_mul_i32 s28, s18, 320
          s_add_u32 s28, s28, {L_WD}
          v_add_u32 v1, s28, v1
          v_and_b32 v2, 3, v0
          v_lshl_add_u32 v3, v2, 3, v1
          v_lshl_add_u32 v2, v2, 4, v1
          s_mul_i32 s28, s18, 480
          s_mul_i32 s29, s61, 5
          s_add_u32 s28, s28, s29
          s_lshl_b32 s28, s28, 10
          s_add_u32 s28, s28, {WS_WD}
          s_cmp_ge_u32 s2, 16
          s_cselect_b32 s28, s28, 0x40000000
          v_lshlrev_b32 v1, 4, v0''')
    for c in range(2):
        for t in range(5):
            for q in range(2):
                off = 160 * c + 10240 * q + (64 * (t >> 1) + 8 * (t & 1) if t < 4 else 128)
                A(f'ds_read_b64_tr_b16 {v(64 + 20*c + 4*t + 2*q, 2)}, {"v2" if t < 4 else "v3"} offset:{off}')
        A(f's_add_u32 s29, s28, 4096')
        for t in range(5):
            A(f's_waitcnt lgkmcnt({8 - 2*t})')
            A(f'buffer_store_dwordx4 {v(64 + 20*c + 4*t, 4)}, v1, {s(SWS,4)}, {"s28" if t < 4 else "s29"} offen offset:{1024 * (t & 3)}{sc}'); vm.issue('wds')
        A(f's_add_u32 s28, s28, {240*1024}')

def colsum_final(A, sc='', after=''):
    A(f'''s_cmp_lg_u32 s16, 7
          s_cbranch_scc1 f1_nocs
          s_cmp_ge_u32 s2, 48
          s_cbranch_scc1 f1_cssig
          v_lshrrev_b32 v1, 5, v0
          v_lshlrev_b32 v1, 8, v1
          v_and_b32 v2, 7, v0
          v_lshl_add_u32 v1, v2, 4, v1
          v_bfe_u32 v2, v0, 3, 2
          v_lshl_add_u32 v1, v2, 2, v1
          v_add_u32 v1, {L_CS}, v1''')
    for half in range(2):
        for n in range(4): A(f'ds_read_b32 {v(64 + 4*half + n)}, v1 offset:{1024*n + 512*half}')
    A('s_waitcnt lgkmcnt(0)')
    for n in (4, 2, 1):
        for q in range(n): A(f'v_add_f32 {v(64 + q)}, {v(64 + q)}, {v(64 + n + q)}')
    A(f'''v_cvt_pk_bf16_f32 v2, v64, v64
          v_lshlrev_b32 v2, 16, v2
          v_sub_f32 v3, v64, v2
          v_cvt_pk_bf16_f32 v2, v2, v3
          v_lshrrev_b32 v3, 4, v0
          v_lshlrev_b32 v3, 7, v3
          v_and_b32 v4, 15, v0
          v_lshl_add_u32 v3, v4, 2, v3
          s_lshl_b32 s28, s19, 9
          s_bitcmp1_b32 s2, 2
          s_cselect_b32 s29, 64, 0
          s_add_u32 s28, s28, s29
          s_add_u32 s28, s28, {WS_CS}
          buffer_store_dword v2, v3, {s(SWS,4)}, s28 offen{sc}
          f1_cssig:
          {after}
          f1_nocs:''')
```

```python
from asmlib import *
from layout import *
import math

LOG2E = 1.4426950408889634
GC1 = -2 * math.sqrt(2 / math.pi) * LOG2E
GC2 = GC1 * 0.044715

STAGE = 49152
ACC = 128
XB = (64, 88); WB = (72, 96)
VXA, VWA = 2, 6
VC = 48
VCS, VSTAT = 112, 116
VST = 13
S_X, S_W, S_WS = 4, 8, 12
S_CNT, S_DELTA = 24, 25

def acc(i, t): return ACC + 16 * (4 * i + t)

def loader_addr(A):
    A('''v_lshrrev_b32 v30, 3, v0            ; r = l>>3 (0..7)
         v_and_b32 v31, 3, v30
         v_lshrrev_b32 v32, 2, v30
         v_lshl_add_u32 v31, v32, 3, v31
         s_and_b32 s28, s19, 1
         s_lshl_b32 s28, s28, 4              ; 16c
         v_add_u32 v31, s28, v31
         s_lshr_b32 s29, s19, 1
         s_lshl_b32 s30, s17, 1
         s_add_u32 s29, s29, s30             ; b
         s_lshl_b32 s29, s29, 1              ; 2b
         v_lshl_add_u32 v31, v31, 6, s29     ; s = 64 s1 + 2b
         v_mul_u32_u24 v31, 1280, v31
         v_and_b32 v32, 7, v0
         v_lshrrev_b32 v33, 4, v0            ; (rho>>1)&7 = 4(n&1) + (l>>4)
         v_xor_b32 v34, v32, v33
         v_lshl_add_u32 v10, v34, 4, v31
         v_xor_b32 v34, 4, v34
         v_lshl_add_u32 v11, v34, 4, v31''')
    A(f'v_add_u32 v11, {4*64*1280}, v11\nv_add_u32 v12, 1280, v10\nv_add_u32 v13, 1280, v11')
    A('''v_lshrrev_b32 v30, 4, v0
         s_lshr_b32 s28, s19, 1
         s_lshl_b32 s28, s28, 2              ; 4 up
         v_or_b32 v31, s28, v30
         v_bfe_u32 v32, v0, 1, 3
         v_xor_b32 v31, v31, v32
         v_lshlrev_b32 v31, 5, v31
         v_and_b32 v32, 1, v0
         v_lshl_add_u32 v31, v32, 4, v31
         v_mul_u32_u24 v30, 3072, v30
         v_add_u32 v20, v30, v31''')
    for m in range(1, 8):
        A(f'v_add_u32 {v(20+m)}, {8*3072*m}, v20')
    A(f'''s_and_b32 s28, s19, 1
          s_mul_i32 s21, s28, {4*3072}
          s_lshl_b32 s29, s18, 8
          s_add_u32 s21, s21, s29
          s_lshl_b32 s22, s19, 12
          s_lshr_b32 s23, s19, 1
          s_lshl_b32 s23, s23, 14
          s_lshl_b32 s28, s28, 10
          s_add_u32 s23, s23, s28
          s_add_u32 s23, s23, 16384
          s_mov_b32 s20, 0''')

def srds(A):
    A(f's_mov_b32 s4, s40\ns_mov_b32 s5, s41\ns_mov_b32 s6, {S*D*2}\ns_mov_b32 s7, 0x20000')
    A(f's_cmp_lt_u32 s19, 2\ns_cselect_b32 s8, s48, s50\ns_cselect_b32 s9, s49, s51')
    A(f's_mov_b32 s10, {D*F*2}\ns_mov_b32 s11, 0x20000')

def issue_slab(A, vm, sl, lo=0, hi=12):
    st = (sl % 3) * STAGE
    order = [('x', 0), ('x', 1), ('x', 2), ('x', 3)] + [('w', m) for m in range(8)]
    for k, n in order[lo:hi]:
        if k == 'x':
            A(f's_add_u32 m0, s22, {st + 1024*n}\ns_nop 0\nbuffer_load_dwordx4 {v(10 + n)}, {s(S_X, 4)}, s20 offen lds')
        else:
            A(f's_add_u32 m0, s23, {st + 2048*n}\ns_nop 0\nbuffer_load_dwordx4 {v(20 + n)}, {s(S_W, 4)}, s21 offen lds')
        vm.issue(sl)
    if hi == 12: A(f's_add_u32 s20, s20, 128\ns_add_u32 s21, s21, {64*3072}')

def prefetch(A, vm, name):
    A(f'''s_lshl_b32 s28, s34, 2
          s_add_u32 s28, s28, s19             ; 0..767
          s_cmp_ge_u32 s28, 320
          s_cbranch_scc1 {name}_pfw
          s_mul_i32 s28, s28, 45
          v_min_u32 v30, 44, v0
          v_add_u32 v30, s28, v30
          v_mul_u32_u24 v31, 9363, v30
          v_lshrrev_b32 v31, 16, v31          ; row = n / 7
          v_mul_u32_u24 v32, 7, v31
          v_sub_u32 v30, v30, v32
          v_mul_u32_u24 v31, 1280, v31
          v_lshl_add_u32 v30, v30, 7, v31
          buffer_load_dword v40, v30, {s(S_X, 4)}, 0 offen offset:384
          s_branch {name}_pfd
          {name}_pfw:
          s_sub_u32 s28, s28, 320
          s_cmp_ge_u32 s28, 224
          s_cselect_b32 s36, s50, s48
          s_cselect_b32 s37, s51, s49
          s_cselect_b32 s29, 224, 0
          s_mov_b32 s38, {D*F*2}
          s_mov_b32 s39, 0x20000
          s_sub_u32 s28, s28, s29
          s_mul_i32 s28, s28, 6144
          s_add_u32 s28, s28, {192*3072}
          v_min_u32 v30, 47, v0
          v_lshlrev_b32 v30, 7, v30
          buffer_load_dword v40, v30, s[36:39], s28 offen
          {name}_pfd:''')
    vm.issue('pf')

def loader(A, name, pf=True, wait_aux=None, wait_early=None):
    vm = VM()
    srds(A)
    issue_slab(A, vm, 0); issue_slab(A, vm, 1, 0, 5)
    A(f's_waitcnt vmcnt({vm.count(0)})\ns_barrier')
    issue_slab(A, vm, 1, 5, 12)
    if pf: prefetch(A, vm, name)
    issue_slab(A, vm, 2, 0, 4)
    A(f's_waitcnt vmcnt({vm.count(1)})\ns_barrier')
    issue_slab(A, vm, 2, 4, 12); issue_slab(A, vm, 3, 0, 6)
    A(f's_waitcnt vmcnt({vm.count(2)})\ns_barrier')
    issue_slab(A, vm, 3, 6, 12); issue_slab(A, vm, 4)
    for sl in range(2, 9):
        if sl == 3 and wait_early: wait_early(A); vm.q = []
        if sl == 8 and wait_aux: wait_aux(A)
        A(f's_waitcnt vmcnt({vm.count(sl + 1)})\ns_barrier')
        if sl + 3 < 10: issue_slab(A, vm, sl + 3)

def reads(buf, j):
    xb, wb = XB[buf], WB[buf]
    def xr(i): return f'ds_read_b128 {v(xb + 4*i, 4)}, {v(VXA + j)} offset:{4096*i}'
    def wr(t, q): return f'ds_read_b64_tr_b16 {v(wb + 4*t + 2*q, 2)}, {v(VWA + t)} offset:{(16*j + 4*q) * 256}'
    return [xr(0), wr(0, 0), wr(0, 1), xr(1), wr(1, 0), wr(1, 1), wr(2, 0), wr(2, 1), wr(3, 0), wr(3, 1)]

def mfmas(buf):
    xb, wb = XB[buf], WB[buf]
    return [f'v_mfma_f32_32x32x16_bf16 {v(acc(i, t), 16)}, {v(wb + 4*t, 4)}, {v(xb + 4*i, 4)}, {v(acc(i, t), 16)}'
            for t in range(4) for i in range(2)]

def compute_setup(A):
    A('''v_and_b32 v30, 31, v0
         s_lshr_b32 s28, s19, 1
         s_lshl_b32 s28, s28, 13
         v_lshl_add_u32 v31, v30, 7, s28
         v_bfe_u32 v32, v0, 1, 3
         v_lshrrev_b32 v33, 5, v0
         v_xor_b32 v32, v32, v33''')
    for j in range(4):
        A(f'v_xor_b32 v33, {2*j}, v32\nv_lshl_add_u32 {v(VXA+j)}, v33, 4, v31')
    A('''v_bfe_u32 v30, v0, 4, 1             ; up
         v_bfe_u32 v31, v0, 2, 2             ; r
         v_lshrrev_b32 v32, 5, v0            ; h
         v_lshl_add_u32 v33, v32, 3, v31     ; 8h + r
         v_lshlrev_b32 v33, 8, v33
         v_lshl_add_u32 v33, v30, 14, v33
         v_and_b32 v34, 3, v0
         v_lshl_add_u32 v33, v34, 3, v33
         v_add_u32 v33, 16384, v33
         v_lshl_add_u32 v31, v30, 2, v31     ; r + 4up
         s_and_b32 s28, s19, 1
         s_lshl_b32 s28, s28, 2
         v_xor_b32 v31, s28, v31''')
    for t in range(4):
        A(f'v_xor_b32 v34, {t}, v31\nv_lshl_add_u32 {v(VWA+t)}, v34, 5, v33')
    for r in range(ACC, ACC + 128):
        A(f'v_mov_b32 {v(r)}, 0')
    A(f'''v_bfe_u32 v30, v0, 4, 1
          v_mul_u32_u24 v30, 49152, v30
          v_lshrrev_b32 v31, 5, v0
          v_lshl_add_u32 v30, v31, 8, v30
          v_and_b32 v31, 15, v0
          v_lshl_add_u32 {v(VST)}, v31, 4, v30
          v_and_b32 v30, 31, v0
          v_lshlrev_b32 v15, 3, v30
          v_lshlrev_b32 v14, 2, v30
          s_lshl_b32 s26, s18, 1
          s_and_b32 s29, s19, 1
          s_add_u32 s26, s26, s29
          s_lshl_b32 s26, s26, 9
          s_add_u32 s26, s26, {WS_CS}
          s_lshl_b32 s27, s17, 1
          s_lshr_b32 s30, s19, 1
          s_add_u32 s27, s27, s30
          s_lshl_b32 s27, s27, 9
          s_add_u32 s27, s27, {WS_ST}
          s_mov_b32 s32, {STAGE}
          s_mov_b32 s33, {-2*STAGE}
          s_mov_b32 {s(S_CNT)}, 0
          s_mov_b32 s29, 0''')

def ext_loads(sc):
    L = [f'buffer_load_dword {v(VCS + t)}, v14, {s(S_WS, 4)}, s26 offen offset:{128*t}{sc}' for t in range(4)]
    L += [f'buffer_load_dwordx2 {v(VSTAT + 2*i, 2)}, v15, {s(S_WS, 4)}, s27 offen offset:{256*i}{sc}' for i in range(2)]
    return L

def slab(A, last=False, sc='', more=()):
    for j in range(4):
        buf = j & 1
        rd = reads(buf ^ 1, (j + 1) & 3) if not (last and j == 3) else []
        A('s_waitcnt lgkmcnt(0)')
        if j == 3 and not last: A('s_barrier')
        ext = ext_loads(sc) if (last and j == 0) else list(more) if (last and j == 1) else []
        k = 0
        for g, m in enumerate(mfmas(buf)):
            A(m)
            A.extend(rd[2*g:2*g + 2])
            if g >= 2: A.extend(ext[g - 2:g - 1])
            if j == 2 and not last:
                if g == 4: A.extend([f's_add_u32 s29, s29, 1', 's_cmp_eq_u32 s29, 3', f's_cselect_b32 {s(S_DELTA)}, s33, s32', 's_cselect_b32 s29, 0, s29'])
                if g == 5: A.extend([f'v_add_u32 {v(VXA+q)}, {s(S_DELTA)}, {v(VXA+q)}' for q in range(4)])
                if g == 6: A.extend([f'v_add_u32 {v(VWA+q)}, {s(S_DELTA)}, {v(VWA+q)}' for q in range(4)])
            if j == 3 and g == 5 and not last:
                A(f's_add_u32 {s(S_CNT)}, {s(S_CNT)}, 1\ns_cmp_lt_u32 {s(S_CNT)}, 9')

def mainloop(A, name, sc='', stamp=lambda: None, more=()):
    A('s_barrier')
    stamp()
    A.extend(reads(0, 0))
    A.block(name + '_loop')
    slab(A)
    A(f's_cbranch_scc1 {name}_loop')
    A.block(name + '_epi')
    slab(A, last=True, sc=sc, more=more)

def ext_apply(A):
    xb, wb = XB[0], WB[0]
    A('v_cmp_gt_u32 vcc, 32, v0')
    for t in range(4):
        for q in range(1, 4): A(f'v_mov_b32 {v(wb + 4*t + q)}, 0')
    for i in range(2):
        for q in range(1, 4): A(f'v_mov_b32 {v(xb + 4*i + q)}, 0')
    A('s_waitcnt vmcnt(0)')
    for t in range(4): A(f'v_mov_b32 {v(wb + 4*t)}, {v(VCS + t)}')
    for i in range(2): A(f'v_cndmask_b32 {v(xb + 4*i)}, 0, {v(VSTAT + 2*i)}, vcc')
    A('s_nop 1')
    mf = mfmas(0)
    fill = []
    for i in range(2):
        r = VSTAT + 2 * i + 1; c = VC + 6 * i
        fill += [f'v_mul_f32 {v(c+4)}, {v(r)}, {v(r)}', f'v_mul_f32 {v(c)}, {fhex(GC1)}, {v(r)}', f'v_mul_f32 {v(c+2)}, {v(c+4)}, {v(r)}',
                 f'v_rcp_f32 {v(c+4)}, {v(c+4)}', f'v_mul_f32 {v(c+2)}, {fhex(GC2)}, {v(c+2)}']
    fill += f'''s_lshl_b32 s28, s17, 3
          s_lshr_b32 s29, s19, 1
          s_lshl_b32 s29, s29, 2
          s_add_u32 s28, s28, s29
          s_mul_i32 s28, s28, 49152
          s_lshl_b32 s29, s18, 2
          s_and_b32 s30, s19, 1
          s_lshl_b32 s30, s30, 1
          s_add_u32 s29, s29, s30
          s_lshl_b32 s29, s29, 10
          s_add_u32 s28, s28, s29
          s_add_u32 s62, s28, {WS_H}
          s_add_u32 s63, s62, {2*49152}'''.split('\n')
    A.extend(interleave(mf, fill))

def gelu_tile(b, T, out, i):
    L = []
    P = lambda r: v(r, 2)
    bc = 'op_sel_hi:[1,0,0]'
    VC1, VC2, VIR = VC + 6*i, VC + 6*i + 2, VC + 6*i + 4
    for q in range(4): L.append(f'v_pk_mul_f32 {P(T+2*q)}, {P(b+2*q)}, {P(b+2*q)}')
    for q in range(4): L.append(f'v_pk_fma_f32 {P(T+2*q)}, {P(T+2*q)}, {P(VC2)}, {P(VC1)} {bc}')
    for q in range(4): L.append(f'v_pk_mul_f32 {P(T+2*q)}, {P(T+2*q)}, {P(b+2*q)}')
    for q in range(8): L.append(f'v_exp_f32 {v(T+q)}, {v(T+q)}')
    for q in range(4): L.append(f'v_pk_mul_f32 {P(T+8+2*q)}, {P(b+2*q)}, {P(b+8+2*q)}')
    for q in range(4): L.append(f'v_pk_fma_f32 {P(T+2*q)}, {P(T+2*q)}, {P(VIR)}, {P(VIR)} {bc}')
    for q in range(8): L.append(f'v_rcp_f32 {v(T+q)}, {v(T+q)}')
    L.append('s_nop 0')
    for q in range(4): L.append(f'v_pk_mul_f32 {P(T+2*q)}, {P(T+2*q)}, {P(T+8+2*q)}')
    for q in range(4): L.append(f'v_cvt_pk_bf16_f32 {v(out+q)}, {v(T+2*q)}, {v(T+2*q+1)}')
    return L

def epilogue(A, sc='', hook=None):
    n = 0
    for t in range(4):
        for i in range(2):
            out = 96 + 4 * (n % 4); n += 1
            A.extend(gelu_tile(acc(i, t), 32, out, i))
            A(f'buffer_store_dwordx4 {v(out, 4)}, {v(VST)}, {s(S_WS, 4)}, {s(62 + i)} offen offset:{(t >> 1) * 1024 + (t & 1) * 512}{sc}')
            if hook: hook(n)
```

```python
from asmlib import *
from layout import *
import math
LOG2E = 1.4426950408889634

T_BASE = 61440
SLOT = 20480
ACCY, ACCS = 8, 28
AF = (48, 68)
HB = 88
XR = 136
VH, VRD, VUR, VXO, VTW = 2, 3, 4, 5, 6
VU = 146
GS = 150
S_X, S_O, S_WS = 4, 8, 12
S_B, S_CB = 17, 18
S_H, S_WD, S_U = 20, 21, 22

def tgen_chain(slot):
    L = []
    c0, c1 = GS, GS + 8
    K1, K10, N, A0, T0, T1, SP = GS + 16, GS + 17, GS + 18, GS + 19, GS + 20, GS + 21, GS + 22
    PK = GS + 24
    amp = 2.0 / 640
    p = 80 + 5 * slot
    L += [f'v_bfe_u32 {v(T0)}, v0, 2, 2', f'v_lshlrev_b32 {v(T0)}, {s(p+1)}, {v(T0)}', f'v_and_b32 {v(T1)}, 3, v0',
          f'v_add3_u32 {v(T0)}, {v(T0)}, {v(T1)}, {s(p)}', f'v_cvt_f32_u32 {v(N)}, {v(T0)}',
          f'v_add_u32 {v(VTW)}, {s(p+2)}, {v(VH)}',
          f'v_lshlrev_b32 {v(T1)}, 31, v0', f'v_and_b32 {v(T1)}, {s(p+4)}, {v(T1)}', f'v_xor_b32 {v(SP)}, {fhex(amp/2)}, {v(T1)}',
          f'v_cmp_gt_u32 s[36:37], 16, v0',
          f'v_lshrrev_b32 {v(A0)}, 4, v0', f'v_mul_u32_u24 {v(A0)}, 80, {v(A0)}', f'v_cvt_f32_u32 {v(A0)}, {v(A0)}']
    def direct(dst, kexpr, phase, scale):
        R = list(kexpr)
        R += [f'v_mul_f32 {v(T0)}, {v(T0)}, {v(N)}',
              f'v_mul_f32 {v(T1)}, s35, {v(T0)}', f'v_floor_f32 {v(T1)}, {v(T1)}',
              f'v_fmac_f32 {v(T0)}, {fhex(-640.0)}, {v(T1)}']
        R += [f'v_mul_f32 {v(T0)}, s35, {v(T0)}']
        if phase: R += [f'v_add_f32 {v(T0)}, {s(p+3)}, {v(T0)}']
        R += [f'v_cos_f32 {v(dst)}, {v(T0)}', 's_nop 0', f'v_mul_f32 {v(dst)}, {fhex(scale)}, {v(dst)}']
        return R
    L += direct(K1, [f'v_mov_b32 {v(T0)}, 1.0'], False, 2.0)
    L += direct(K10, [f'v_mov_b32 {v(T0)}, {fhex(10.0)}'], False, 2.0)
    for j, row in ((0, c0), (1, c1)):
        for e in (0, 1):
            L += direct(row + e, [f'v_add_f32 {v(T0)}, {fhex(10.0*e + j)}, {v(A0)}'], True, amp)
    for e in range(2, 8):
        for row in (c0, c1):
            L.append(f'v_fma_f32 {v(row+e)}, {v(K10)}, {v(row+e-1)}, -{v(row+e-2)}')
    rows = [c0, c1]
    for j in range(10):
        row = rows[j & 1]
        if j >= 2:
            for e in range(8):
                L.append(f'v_fma_f32 {v(row+e)}, {v(K1)}, {v(rows[(j-1)&1]+e)}, -{v(row+e)}')
        pk = PK + 4 * (j & 1)
        first = row
        if j == 0:
            L.append(f'v_cndmask_b32 {v(T0)}, {v(row)}, {v(SP)}, s[36:37]'); first = T0
        for q in range(4):
            L.append(f'v_cvt_pk_bf16_f32 {v(pk+q)}, {v(first if q == 0 else row+2*q)}, {v(row+2*q+1)}')
        L.append(f'ds_write_b128 {v(VTW)}, {v(pk, 4)} offset:{5120*j}')
    return L

def tgen_params(slot):
    p = 80 + 5 * slot
    return [f's_add_u32 s28, s16, {4*slot}', 's_cmp_ge_u32 s28, 10', 's_cselect_b32 s29, 2, 0', 's_sub_u32 s28, s28, s29',
          's_cmp_ge_u32 s28, 5', 's_cselect_b32 s30, 1, 0', 's_cselect_b32 s29, 5, 0', 's_sub_u32 s28, s28, s29',
          's_lshr_b32 s29, s28, 1', 's_lshl_b32 s29, s29, 5', 's_and_b32 s31, s28, 1', 's_lshl_b32 s31, s31, 2', 's_add_u32 s29, s29, s31',
          's_mul_i32 s31, s18, 80', f's_add_u32 {s(p)}, s29, s31',
          's_cmp_eq_u32 s28, 4', f's_cselect_b32 {s(p+1)}, 2, 3',
          's_mul_i32 s31, s30, 50', 's_add_u32 s31, s31, s28', 's_lshl_b32 s31, s31, 10', f's_add_u32 {s(p+2)}, s31, {T_BASE}',
          f's_mul_i32 {s(p+3)}, s30, 0x3e800000', f's_lshl_b32 {s(p+4)}, s30, 31']

NG2, NG = 12, 17
def group_dma(G):
    slot = (G % 3) * SLOT
    out = []
    if G < NG2:
        for i in range(5):
            out.append((f's_add_u32 m0, s23, {slot + 4096*i}', f'buffer_load_dwordx4 {v(VH)}, {s(S_WS,4)}, {s(S_WD)} offen lds', f's_add_u32 {s(S_WD)}, {s(S_WD)}, 4096'))
    elif G < NG:
        for i in range(4):
            out.append((f's_add_u32 m0, s24, {slot + 1024*i}', f'buffer_load_dwordx4 {v(VU+i)}, {s(S_WS,4)}, {s(S_U)} offen lds',
                        f's_add_u32 {s(S_U)}, {s(S_U)}, {128*US}' if i == 3 else None))
    return out
def h_load(G, i):
    if G >= NG2: return None
    r = HB + 16 * (G % 3) + 4 * i
    return f'buffer_load_dwordx4 {v(r, 4)}, {v(VH)}, {s(S_WS,4)}, {s(S_H)} offen offset:{1024*i}'

def a_reads(G, kk, buf):
    if G < NG2:
        return [f'ds_read_b128 {v(AF[buf] + 4*t, 4)}, {v(VH)} offset:{(G % 3) * SLOT + (5*kk + t) * 1024}' for t in range(5)]
    j = 4 * (G - NG2) + kk
    big = (5 * j + 4) * 1024 >= 65536
    rd = [f'ds_read_b128 {v(AF[buf] + 4*t, 4)}, {v(VRD + 0 if not big else 7)} offset:{(5*j + t) * 1024 - (51200 if big else 0)}' for t in range(5)]
    ub = HB + 4 * buf
    ur = [f'ds_read_b64_tr_b16 {v(ub + 2*q, 2)}, {v(VUR)} offset:{(G % 3) * SLOT + 4096*kk + 512*q}' for q in range(2)]
    return ur + rd
def mfmas(G, kk, buf):
    out = []
    for t in range(5):
        if G < NG2:
            d = ACCY + 4 * t; b = HB + 16 * (G % 3) + 4 * kk; first = (G == 0 and kk == 0)
        else:
            d = ACCS + 4 * t; b = HB + 4 * buf; first = (G == NG2 and kk == 0)
        out.append(f'v_mfma_f32_16x16x32_bf16 {v(d, 4)}, {v(AF[buf] + 4*t, 4)}, {v(b, 4)}, {"0" if first else v(d, 4)}')
    return out

def body(A, stamp=lambda i: None):
    vm = VM()
    A(f'''s_mov_b32 s4, s40\ns_mov_b32 s5, s41\ns_mov_b32 s6, {S*D*2}\ns_mov_b32 s7, 0x20000
          s_mov_b32 s8, s54\ns_mov_b32 s9, s55\ns_mov_b32 s10, {S*D*2}\ns_mov_b32 s11, 0x20000
          s_mov_b32 s12, s58\ns_mov_b32 s13, s59\ns_mov_b32 s14, {WS_SIZE}\ns_mov_b32 s15, 0x20000
          v_lshlrev_b32 {v(VH)}, 4, v0
          s_mul_i32 {s(S_WD)}, s18, {48*5*1024}
          s_lshl_b32 s23, s16, 10
          s_add_u32 {s(S_WD)}, {s(S_WD)}, s23
          s_add_u32 {s(S_WD)}, {s(S_WD)}, {WS_WD}
          s_lshl_b32 s28, s17, 2
          s_add_u32 s28, s28, s16
          s_mul_i32 {s(S_H)}, s28, 49152
          s_add_u32 {s(S_H)}, {s(S_H)}, {WS_H}''')
    def issue_dma(d, tag, nop=True):
        A(d[0])
        if nop: A('s_nop 0')
        A(d[1]); vm.issue(tag)
        if d[2]: A(d[2])
    def issue_h(G, i):
        A(h_load(G, i)); vm.issue(('h', G))
        if i == 3: A(f's_add_u32 {s(S_H)}, {s(S_H)}, 4096')
    for G in range(2):
        for d in group_dma(G): issue_dma(d, ('d', G))
        for i in range(4): issue_h(G, i)
    d2 = group_dma(2)
    issue_dma(d2[0], ('d', 2)); issue_dma(d2[1], ('d', 2)); issue_h(2, 0)
    A(f'''v_and_b32 v7, 3, v0
          v_bfe_u32 v8, v0, 2, 1
          v_lshl_add_u32 v7, v8, 3, v7
          v_bfe_u32 v8, v0, 3, 1
          v_lshl_add_u32 v7, v8, 2, v7
          s_lshr_b32 s28, s16, 1
          s_lshl_b32 s28, s28, 4
          v_add_u32 v7, s28, v7               ; s1
          s_lshl_b32 s28, s17, 1
          s_and_b32 s29, s16, 1
          s_add_u32 s28, s28, s29
          v_lshl_add_u32 v7, v7, 6, s28
          s_movk_i32 s29, 1280
          v_mul_lo_u32 v7, v7, s29
          s_mul_i32 s28, s18, 160
          v_lshrrev_b32 v8, 4, v0
          v_lshl_add_u32 v9, v8, 4, v7
          v_add_u32 {v(VXO)}, s28, v9
          v_lshl_add_u32 v9, v8, 3, v7
          v_add_u32 v1, s28, v9''')
    A(f'buffer_load_dwordx4 {v(XR, 4)}, {v(VXO)}, {s(S_X,4)}, 0 offen'); vm.issue('x')
    A(f'buffer_load_dwordx4 {v(XR+4, 4)}, {v(VXO)}, {s(S_X,4)}, 0 offen offset:64'); vm.issue('x')
    A(f'buffer_load_dwordx2 {v(XR+8, 2)}, v1, {s(S_X,4)}, 0 offen offset:128'); vm.issue('x')
    A(f'''v_lshrrev_b32 v7, 3, v0
          v_mul_u32_u24 v7, {US}, v7
          v_bfe_u32 v8, v0, 1, 2
          v_bfe_u32 v9, v0, 4, 1
          v_xor_b32 v8, v8, v9
          v_and_b32 v9, 1, v0
          v_lshl_add_u32 v7, v9, 4, v7
          v_lshl_add_u32 {v(VU)}, v8, 5, v7
          v_xor_b32 v8, 2, v8
          v_lshl_add_u32 {v(VU+1)}, v8, 5, v7
          v_add_u32 {v(VU+1)}, {8*US}, {v(VU+1)}
          v_add_u32 {v(VU+2)}, {16*US}, {v(VU)}
          v_add_u32 {v(VU+3)}, {16*US}, {v(VU+1)}
          s_lshl_b32 s24, s16, 12
          s_mul_i32 {s(S_U)}, s16, {32*US}
          s_lshl_b32 s28, s17, 7
          s_add_u32 {s(S_U)}, {s(S_U)}, s28
          s_add_u32 {s(S_U)}, {s(S_U)}, {WS_U}
          v_lshrrev_b32 v7, 4, v0             ; g
          v_bfe_u32 v8, v0, 2, 2              ; r
          v_lshl_add_u32 v9, v7, 3, v8
          v_lshlrev_b32 v9, 7, v9
          v_and_b32 v7, 1, v7
          v_lshrrev_b32 v8, 1, v8
          v_lshl_add_u32 v7, v7, 1, v8        ; f = b1 + 2 b3
          v_xor_b32 v7, s16, v7
          v_lshl_add_u32 v9, v7, 5, v9
          v_and_b32 v7, 3, v0
          v_lshl_add_u32 {v(VUR)}, v7, 3, v9
          v_add_u32 {v(VRD)}, {T_BASE}, {v(VH)}
          v_add_u32 v7, {T_BASE + 51200}, {v(VH)}
          s_mov_b32 s35, {fhex(1.0/640)}''')
    for sl in range(3): A.extend(tgen_params(sl))
    gen = tgen_chain(0) + tgen_chain(1) + tgen_chain(2)
    npre = 150
    A.extend(gen[:npre]); gen = gen[npre:]
    A(f's_waitcnt vmcnt({vm.count(("d", 0), ("h", 0))})\ns_barrier')
    stamp(3)
    A.extend(a_reads(0, 0, 0))
    per = -(-len(gen) // (4 * 9))
    step = 0
    for G in range(NG):
        if G == NG2: stamp(4)
        for kk in range(4):
            buf = step & 1; step += 1
            last = (G == NG - 1 and kk == 3)
            nG, nk = (G, kk + 1) if kk < 3 else (G + 1, 0)
            rd = [] if last else a_reads(nG, nk, buf ^ 1)
            if kk == 3 and not last:
                A(f's_waitcnt vmcnt({vm.count(("d", G+1), ("h", G+1))}) lgkmcnt(0)\ns_barrier')
            else:
                A('s_waitcnt lgkmcnt(0)')
            lG = G + 3 if kk == 3 else G + 2
            dl = group_dma(lG)
            idx = {3: (0, 1), 0: (2,), 1: (3,), 2: (4,)}[kk]
            ds = [dl[i] for i in idx if i < len(dl)]
            hi = (kk + 1) & 3
            hl = h_load(lG, hi)
            mf = mfmas(G, kk, buf)
            g = gen[:per]; gen = gen[per:]
            seq = []
            for t, m in enumerate(mf):
                A(m)
                k0 = (len(rd) * t) // 4; k1 = (len(rd) * (t + 1)) // 4
                if t < 4:
                    if t < len(ds): A(ds[t][0])
                    A.extend(rd[k0:k1])
                    if t < len(ds):
                        if k1 == k0: A('s_nop 0')
                        A(ds[t][1]); vm.issue(('d', lG))
                        if ds[t][2]: A(ds[t][2])
                    if t == 2 and hl: issue_h(lG, hi)
                A.extend(g[(len(g) * t) // 5:(len(g) * (t + 1)) // 5])
    assert not gen
    stamp(5)
    T = AF[0]
    A(f's_mov_b32 s28, {fhex(-LOG2E)}\ns_waitcnt vmcnt(0)')
    for r in range(20): A(f'v_mul_f32 {v(T+r)}, s28, {v(ACCY+r)}')
    for r in range(20): A(f'v_exp_f32 {v(T+r)}, {v(T+r)}')
    for r in range(0, 20, 2): A(f'v_pk_mul_f32 {v(ACCY+r, 2)}, {v(ACCY+r, 2)}, {v(ACCS+r, 2)}')
    for r in range(20): A(f'v_add_f32 {v(T+r)}, 1.0, {v(T+r)}')
    for r in range(20): A(f'v_rcp_f32 {v(T+r)}, {v(T+r)}')
    for r in range(10):
        A(f'v_lshlrev_b32 {v(ACCS+2*r)}, 16, {v(XR+r)}\nv_and_b32 {v(ACCS+2*r+1)}, 0xffff0000, {v(XR+r)}')
    for r in range(0, 20, 2): A(f'v_pk_fma_f32 {v(T+r, 2)}, {v(T+r, 2)}, {v(ACCY+r, 2)}, {v(ACCS+r, 2)}')
    for r in range(10): A(f'v_cvt_pk_bf16_f32 {v(XR+r)}, {v(T+2*r)}, {v(T+2*r+1)}')
    A(f'buffer_store_dwordx4 {v(XR, 4)}, {v(VXO)}, {s(S_O,4)}, 0 offen')
    A(f'buffer_store_dwordx4 {v(XR+4, 4)}, {v(VXO)}, {s(S_O,4)}, 0 offen offset:64')
    A(f'buffer_store_dwordx2 {v(XR+8, 2)}, v1, {s(S_O,4)}, 0 offen offset:128')
```

```python
import numpy as np
S, D, F = 2048, 640, 1536
WS_H   = 0
WS_XN  = 8 << 20
WS_Y   = 12 << 20
WS_WT  = 16 << 20
WS_WD  = 20 << 20
WS_U   = 24 << 20
WS_ST  = 28 << 20
WS_DBG = 32 << 20
WS_SIZE = 268435456
YS = 8192 + 128
US = 4096 + 128

def P_to_s(P):
    P = np.asarray(P)
    b = P >> 6; c = (P >> 5) & 1; u = (P >> 4) & 1; m = P & 15
    s1 = 16 * c + 8 * ((m >> 2) & 1) + 4 * (m >> 3) + (m & 3)
    return 64 * s1 + 2 * b + u

def h_slot_f(p, g, e):
    return 32 * p + 16 * (g >> 1) + 8 * (e >> 2) + 4 * (g & 1) + (e & 3)

def unpack_h(raw):
    raw = raw.reshape(128, 48, 4, 16, 8)
    h = np.zeros((S, F), np.uint16)
    RG, p, g, m, e = np.meshgrid(np.arange(128), np.arange(48), np.arange(4), np.arange(16), np.arange(8), indexing='ij')
    h[P_to_s(16 * RG + m), h_slot_f(p, g, e)] = raw
    return h

def bf16_to_f32(u):
    return (u.astype(np.uint32) << 16).view(np.float32)
def f32_to_bf16(x):
    u = np.ascontiguousarray(x, np.float32).view(np.uint32)
    return ((u + 0x7FFF + ((u >> 16) & 1)) >> 16).astype(np.uint16)

def colmap(t, i):
    t = np.asarray(t); i = np.asarray(i)
    return np.where(t < 4, 32 * (t >> 1) + 8 * (i >> 2) + 4 * (t & 1) + (i & 3), 64 + i)

def pack_h(h):
    RG, p, g, m, e = np.meshgrid(np.arange(128), np.arange(48), np.arange(4), np.arange(16), np.arange(8), indexing='ij')
    return np.ascontiguousarray(h[P_to_s(16 * RG + m), h_slot_f(p, g, e)])

def pack_wd(wd):
    cb, p, t, g, i, e = np.meshgrid(np.arange(8), np.arange(48), np.arange(5), np.arange(4), np.arange(16), np.arange(8), indexing='ij')
    return np.ascontiguousarray(wd[h_slot_f(p, g, e), 80 * cb + colmap(t, i)])

def u_slot(k, part):
    k = np.asarray(k)
    return 32 * (10 * part + k % 10) + k // 10

def pack_u(Ur, Ui):
    U = np.zeros((640, 2048), np.uint16)
    sP = P_to_s(np.arange(2048))
    k = np.arange(320)
    U[u_slot(k, 0)] = Ur[sP].T
    U[u_slot(k, 1)] = Ui[sP].T
    return U
def unpack_u(U):
    U = U.reshape(640, 2048)
    sP = P_to_s(np.arange(2048)); k = np.arange(320)
    Ur = np.zeros((2048, 320), np.uint16); Ui = np.zeros((2048, 320), np.uint16)
    Ur[sP] = U[u_slot(k, 0)].T; Ui[sP] = U[u_slot(k, 1)].T
    return Ur, Ui

def drow(r, h):
    return 8 * (r >> 2) + 4 * h + (r & 3)

def pack_y(Yr, Yi):
    k, s2, ks, h, e = np.meshgrid(np.arange(320), np.arange(64), np.arange(2), np.arange(2), np.arange(8), indexing='ij')
    srow = 64 * drow(8 * ks + e, h) + s2
    return np.ascontiguousarray(np.stack([Yr[srow, k], Yi[srow, k]], axis=2))
def unpack_y(raw):
    raw = raw.reshape(320, 64, 2, 2, 2, 8)
    k, s2, ks, h, e = np.meshgrid(np.arange(320), np.arange(64), np.arange(2), np.arange(2), np.arange(8), indexing='ij')
    srow = 64 * drow(8 * ks + e, h) + s2
    Yr = np.zeros((2048, 320), np.uint16); Yi = np.zeros((2048, 320), np.uint16)
    Yr[srow, k] = raw[:, :, 0]; Yi[srow, k] = raw[:, :, 1]
    return Yr, Yi

def pack_wt(wr, wi):
    wr = wr.copy(); wi = wi.copy()
    for c in (0, 320):
        wr[:, c] = f32_to_bf16(bf16_to_f32(wr[:, c]) * 0.5); wi[:, c] = f32_to_bf16(bf16_to_f32(wi[:, c]) * 0.5)
    k, q, h, j1, jj = np.meshgrid(np.arange(321), np.arange(8), np.arange(2), np.arange(32), np.arange(4), indexing='ij')
    j = j1 + 32 * (8 * q + 4 * h + jj)
    return np.ascontiguousarray(wr[j, k].astype(np.uint32) | (wi[j, k].astype(np.uint32) << 16))

def sfft_tables():
    out = []
    h, a, e = np.meshgrid(np.arange(2), np.arange(32), np.arange(8), indexing='ij')
    def frags(n, aa, ks):
        b = 16 * ks + 8 * (e >> 2) + 4 * h + (e & 3)
        ang = 2 * np.pi * ((aa * b) % n) / n
        c = np.cos(ang); sn = np.sin(ang)
        c[np.abs(c) < 1e-12] = 0; sn[np.abs(sn) < 1e-12] = 0
        return [f32_to_bf16(c.astype(np.float32)), f32_to_bf16(sn.astype(np.float32)), f32_to_bf16((-sn).astype(np.float32) + 0.0)]
    for ks in range(2): out += frags(32, a, ks)
    for ta in range(2):
        for ks in range(4): out += frags(64, a + 32 * ta, ks)
    h, a, jj = np.meshgrid(np.arange(2), np.arange(32), np.arange(4), indexing='ij')
    for which in range(2):
        for t in range(2):
            for rg in range(4):
                row = 8 * rg + 4 * h + jj
                n = (32 * t + row) * a if which == 0 else (32 * t + a) * row
                ang = 2 * np.pi * n / 2048
                sc = 1.0 if which == 0 else 1.0 / 2048 / 320
                out += [(np.cos(ang) * sc).astype(np.float32), (np.sin(ang) * sc).astype(np.float32)]
    return b''.join(np.ascontiguousarray(x).tobytes() for x in out)
TAB_F32, TAB_F64, TAB_TW1, TAB_TW2, TAB_SIZE = 0, 6144, 30720, 47104, 63488

def data_asm(label, data):
    q = np.frombuffer(data, np.uint64)
    lines = [f'.p2align 8\n.type {label},@object\n{label}:']
    for i in range(0, len(q), 8):
        lines.append('.quad ' + ','.join(('0x%x' % x) if x else '0' for x in q[i:i+8]))
    lines.append(f'.size {label}, {len(data)}')
    return '\n'.join(lines) + '\n'
WS_CS = WS_ST + 65536

def strided(raw, n, size, stride):
    return np.stack([raw[i * stride:i * stride + size] for i in range(n)])
def put_strided(img, off, arr, n, stride):
    b = np.ascontiguousarray(arr).view(np.uint8).reshape(n, -1)
    for i in range(n): img[off + i * stride:off + i * stride + b.shape[1]] = b[i]
WS_FL = WS_ST + 131072
FL_U = WS_FL
FL_R = WS_FL + 16384
FL_H = FL_R + 8192
FL_LINES = 128 + 64 + 32
```

```python
from asmlib import *
from layout import *
import common, math
LOG2E = 1.4426950408889634
MF32 = 'v_mfma_f32_32x32x16_bf16'
MF16 = 'v_mfma_f32_16x16x32_bf16'
SLOTS = [69376, 89856, 110336, 48896, 0, 20480]
L_F = [130816 + 8192 * i for i in range(4)]
L_FLG = 163584
L_BIG = SLOTS[0]
L_GATE = SLOTS[3]
S_X, S_O, S_WS = 4, 8, 12

def srds(A):
    A(f'''s_mov_b32 s4, s40\ns_mov_b32 s5, s41\ns_mov_b32 s6, {S*D*2}\ns_mov_b32 s7, 0x20000
          s_mov_b32 s8, s54\ns_mov_b32 s9, s55\ns_mov_b32 s10, {S*D*2}\ns_mov_b32 s11, 0x20000
          s_mov_b32 s12, s58\ns_mov_b32 s13, s59\ns_mov_b32 s14, {WS_SIZE}\ns_mov_b32 s15, 0x20000''')

ACCY = 8; AF = (28, 48); HB = 68; NH = 4
VH, VH2, VH3, VFO, VFA, VFT = 2, 3, 4, 5, 6, 132
S_H, S_WD, S_LW = 20, 21, 23
NGR = 12

def g_setup(A):
    A(f'''v_lshlrev_b32 {v(VH)}, 4, v0
          v_add_u32 {v(VH2)}, 0x10000, {v(VH)}
          s_mul_i32 {s(S_WD)}, s18, {48*5*1024}
          s_lshl_b32 {s(S_LW)}, s19, 10
          s_add_u32 {s(S_WD)}, {s(S_WD)}, {s(S_LW)}
          s_add_u32 {s(S_WD)}, {s(S_WD)}, {WS_WD}
          s_lshl_b32 s28, s17, 2
          s_add_u32 s28, s28, s19
          s_mul_i32 {s(S_H)}, s28, 49152
          s_add_u32 {s(S_H)}, {s(S_H)}, {WS_H}
          s_lshl_b32 s28, s19, 2
          s_add_u32 s28, s28, {L_FLG}
          v_mov_b32 {v(VFO)}, s28
          v_mov_b32 {v(VFA)}, {L_FLG}''')

def wd_dma(g, sc=''):
    return [[f's_add_u32 m0, {s(S_LW)}, {SLOTS[g % 6] + 4096*i}', f's_add_u32 s24, {s(S_WD)}, {20480*g + 4096*i}',
             f'buffer_load_dwordx4 {v(VH)}, {s(S_WS,4)}, s24 offen{sc} lds'] for i in range(5)]
def h_load(g, i, sc=''):
    r = HB + 16 * (g % NH) + 4 * i
    L = [f'buffer_load_dwordx4 {v(r, 4)}, {v(VH)}, {s(S_WS,4)}, {s(S_H)} offen offset:{1024*i}{sc}']
    if i == 3: L.append(f's_add_u32 {s(S_H)}, {s(S_H)}, 4096')
    return L
def a_reads(g, kk, buf):
    out = []
    for t in range(5):
        off = SLOTS[g % 6] + (5 * kk + t) * 1024
        out.append(f'ds_read_b128 {v(AF[buf] + 4*t, 4)}, {v(VH if off < 65536 else VH2)} offset:{off & 65535}')
    return out
def flag_check(A, name, gen):
    A(f'''v_min3_u32 {v(VFT)}, {v(VFT)}, {v(VFT+1)}, {v(VFT+2)}
          v_min_u32 {v(VFT)}, {v(VFT)}, {v(VFT+3)}
          s_nop 0
          v_readfirstlane_b32 s28, {v(VFT)}
          s_cmp_ge_u32 s28, {gen}
          s_cbranch_scc1 {name}_ok''')
    common.sw_wait(A, name, VFA, gen, VFT)
    A(f'{name}_ok:')

def g_prefill(A, vm, groups, sc=''):
    for g in groups:
        for d in wd_dma(g, sc): A.extend(d); vm.issue(('d', g))

def g_main(A, vm, name, pre, sc='', stamp=lambda i: None):
    for g in range(NH - 1):
        for i in range(4): A.extend(h_load(g, i, sc)); vm.issue(('h', g))
        if g == 0: g_prefill(A, vm, range(pre, min(2, 6)), sc); pre = max(pre, 2)
    A(f's_waitcnt vmcnt({vm.count(("d", 0), ("h", 0))})')
    common.sw_arrive(A, VFO, 1, VFT)
    common.sw_wait(A, f'{name}_g0', VFA, 1, VFT)
    stamp(3)
    A.extend(a_reads(0, 0, 0))
    pend = [d for g in range(pre, 6) for d in [(g, x) for x in wd_dma(g, sc)]]
    step = 0
    for g in range(NGR):
        for kk in range(4):
            buf = step & 1; step += 1
            last = (g == NGR - 1 and kk == 3)
            ng, nk = (g, kk + 1) if kk < 3 else (g + 1, 0)
            rd = [] if last else a_reads(ng, nk, buf ^ 1)
            post = []
            if kk == 2 and g + 1 < NGR:
                assert not any(x[0] == g + 1 for x in pend)
                A(f's_waitcnt vmcnt({vm.count(("d", g+1), ("h", g+1))}) lgkmcnt(0)')
                common.sw_arrive(A, VFO, 2 * g + 2, VFT)
                post = [f'ds_read_b128 {v(VFT, 4)}, {v(VFA)}']
            elif kk == 3 and g + 1 < NGR:
                A('s_waitcnt lgkmcnt(0)')
                flag_check(A, f'{name}_f{g}', 2 * g + 2)
                if g < 6:
                    common.sw_arrive(A, VFO, 2 * g + 3, VFT)
                    post = [f'ds_read_b128 {v(VFT, 4)}, {v(VFA)}']
            elif kk == 0 and 1 <= g <= 6:
                A('s_waitcnt lgkmcnt(0)')
                flag_check(A, f'{name}_e{g}', 2 * g + 1)
                pend += [(g + 5, x) for x in wd_dma(g + 5, sc)]
            else:
                A('s_waitcnt lgkmcnt(0)')
            hg = g + NH - 1
            nd = 2 if len(pend) > 5 or kk < 2 else 1
            ds = pend[:nd]; pend = pend[nd:]
            for t in range(5):
                d = ACCY + 4 * t
                A(f'{MF16} {v(d, 4)}, {v(AF[buf] + 4*t, 4)}, {v(HB + 16*(g % NH) + 4*kk, 4)}, {"0" if step == 1 else v(d, 4)}')
                if t < 3: A.extend(rd[2*t:2*t + 2])
                if t == 2: A.extend(post)
                if t == 0 and hg < NGR and kk > 0: A.extend(h_load(hg, kk - 1, sc)); vm.issue(('h', hg))
                if t == 4 and hg < NGR and kk == 3: A.extend(h_load(hg, 3, sc)); vm.issue(('h', hg))
                if 3 <= t < 3 + len(ds): A.extend(ds[t - 3][1]); vm.issue(('d', ds[t - 3][0]))
    assert not pend
    stamp(4)
    T = AF[0]
    A(f'''s_mov_b32 s28, {fhex(-LOG2E)}
          s_mul_i32 s29, s19, 5120
          s_add_u32 s29, s29, {L_GATE}
          v_add_u32 {v(VH3)}, s29, {v(VH)}
          s_nop 3''')
    for r in range(20): A(f'v_mul_f32 {v(T+r)}, s28, {v(ACCY+r)}')
    for r in range(20): A(f'v_exp_f32 {v(T+r)}, {v(T+r)}')
    for r in range(20): A(f'v_add_f32 {v(T+r)}, 1.0, {v(T+r)}')
    for r in range(20): A(f'v_rcp_f32 {v(T+r)}, {v(T+r)}')
    for t in range(5):
        for r in range(4 * t, 4 * t + 4): A(f'v_mul_f32 {v(T+r)}, {v(T+r)}, {v(ACCY+r)}')
        A(f'ds_write_b128 {v(VH3)}, {v(T + 4*t, 4)} offset:{1024*t}')
    A(f'v_mov_b32 {v(VFT)}, 1\ns_waitcnt lgkmcnt(0)\nds_write_b32 {v(VFO)}, {v(VFT)} offset:32')

C32, F64, TW1, TW2 = 120, 144, 192, 224
WTR, DRE, DIM, OWN, OTH, TMP = 104, 72, 88, 40, 56, 24
VL, VB, VP, VFP, VFW, VST = 2, 3, 4, 5, 6, 7
S_K, S_T, S_LB = 20, 21, 22
def fr(base, part, i): return base + 8 * part + 4 * i

def f_setup(A):
    A(f'''s_and_b32 {s(S_T)}, s19, 1
          s_lshl_b32 {s(S_LB)}, s19, 13
          s_add_u32 {s(S_LB)}, {s(S_LB)}, {L_F[0]}
          v_lshlrev_b32 {v(VL)}, 4, v0
          v_add_u32 {v(VB)}, {s(S_LB)}, {v(VL)}
          s_xor_b32 s28, s19, 1
          s_lshl_b32 s28, s28, 13
          s_add_u32 s28, s28, {L_F[0]}
          v_add_u32 {v(VP)}, s28, {v(VL)}
          s_lshl_b32 s28, s19, 2
          s_add_u32 s28, s28, {L_FLG + 16}
          v_mov_b32 {v(VFW)}, s28
          s_and_b32 s28, s28, -8
          v_mov_b32 {v(VFP)}, s28''')

def sf_consts(A, vm, label):
    A(f'''s_getpc_b64 s[36:37]
          {label}_pc:
          s_add_u32 s36, s36, {label}-{label}_pc
          s_addc_u32 s37, s37, 0
          s_mov_b32 s38, {TAB_SIZE}
          s_mov_b32 s39, 0x20000''')
    def ld(reg, soff, imm, tag): A(f'buffer_load_dwordx4 {v(reg, 4)}, {v(VL)}, s[36:39], {soff} offen offset:{imm}'); vm.issue(tag)
    A('s_movk_i32 s28, 3072')
    for i in range(6): ld(C32 + 4 * i, '0' if i < 3 else 's28', 1024 * (i % 3), 'c32')
    A(f's_lshl_b32 s28, {s(S_T)}, 13\ns_add_u32 s28, s28, {TAB_TW1}\ns_add_u32 s29, s28, 4096')
    for i in range(8): ld(TW1 + 4 * i, 's28' if i < 4 else 's29', 1024 * (i & 3), 'tw1')
    for i in range(4):
        A(f's_lshl_b32 s28, {s(S_T)}, 1\ns_xor_b32 s28, s28, {i}\ns_mul_i32 s28, s28, 3072\ns_mul_i32 s29, {s(S_T)}, 12288\ns_add_u32 s28, s28, s29\ns_add_u32 s28, s28, {TAB_F64}')
        for c in range(3): ld(F64 + 12 * i + 4 * c, 's28', 1024 * c, 'f64')
    A(f's_lshl_b32 s28, {s(S_T)}, 13\ns_add_u32 s28, s28, {TAB_TW2}\ns_add_u32 s29, s28, 4096')
    for i in range(8): ld(TW2 + 4 * i, 's28' if i < 4 else 's29', 1024 * (i & 3), 'tw2')

def sf_data(A, vm, sc=''):
    A(f'''s_cmp_eq_u32 {s(S_K)}, 320
          s_cselect_b32 s28, 0, {s(S_K)}
          s_mul_i32 s28, s28, {YS}
          s_lshl_b32 s30, {s(S_T)}, 12
          s_add_u32 s28, s28, s30
          s_add_u32 s28, s28, {WS_Y}
          v_lshrrev_b32 v8, 4, v0
          v_and_b32 v9, 7, v0
          v_xor_b32 v8, v8, v9
          v_lshlrev_b32 v8, 4, v8
          v_lshrrev_b32 v9, 3, v0
          v_lshl_add_u32 v8, v9, 7, v8
          v_xor_b32 v9, 64, v8''')
    for i in range(4):
        A(f's_add_u32 m0, {s(S_LB)}, {1024*i}\ns_add_u32 s29, s28, {1024*i}\nbuffer_load_dwordx4 {"v9" if i & 1 else "v8"}, {s(S_WS,4)}, s29 offen{sc} lds'); vm.issue('y')
    A(f's_mul_i32 s28, {s(S_K)}, {YS}\ns_add_u32 s28, s28, s30\ns_add_u32 s28, s28, {WS_WT}')
    for q in range(4):
        A(f'buffer_load_dwordx4 {v(WTR + 4*q, 4)}, {v(VL)}, {s(S_WS,4)}, s28 offen offset:{1024*q}{sc}'); vm.issue('wt')

def cmul(A, rg, c, sn, conj):
    R, M, o = DRE + 4 * rg, DIM + 4 * rg, TMP
    for q in range(4): A(f'v_mul_f32 {v(o+q)}, {v(R+q)}, {v(c+q)}')
    for q in range(4): A(f'v_mul_f32 {v(o+4+q)}, {v(M+q)}, {v(c+q)}')
    for q in range(4): A(f'v_fma_f32 {v(o+q)}, -{v(M+q)}, {v(sn+q)}, {v(o+q)}' if conj else f'v_fmac_f32 {v(o+q)}, {v(M+q)}, {v(sn+q)}')
    for q in range(4): A(f'v_fmac_f32 {v(o+4+q)}, {v(R+q)}, {v(sn+q)}' if conj else f'v_fma_f32 {v(o+4+q)}, -{v(R+q)}, {v(sn+q)}, {v(o+4+q)}')
    i, d = rg >> 1, 2 * (rg & 1)
    for q in (0, 1): A(f'v_cvt_pk_bf16_f32 {v(fr(OWN, 0, i) + d + q)}, {v(o+2*q)}, {v(o+2*q+1)}')
    for q in (0, 1): A(f'v_cvt_pk_bf16_f32 {v(fr(OWN, 1, i) + d + q)}, {v(o+4+2*q)}, {v(o+4+2*q+1)}')

def cstage(src, cb, i, inv, data_is_a, first):
    C, S_, N = cb, cb + 4, cb + 8
    zr, zi = fr(src, 0, i), fr(src, 1, i)
    ops = [(DRE, C, zr, first), (DIM, C, zi, first), (DRE, N if inv else S_, zi, False), (DIM, S_ if inv else N, zr, False)]
    return [f'{MF32} {v(d, 16)}, {v(z if data_is_a else k, 4)}, {v(k if data_is_a else z, 4)}, {"0" if f else v(d, 16)}' for d, k, z, f in ops]

def exchange_stage(A, name, gen, inv):
    for q in range(4): A(f'ds_write_b128 {v(VB)}, {v(OWN + 4*q, 4)} offset:{1024*q}')
    mf = cstage(OWN, F64, 0, inv, inv, True) + cstage(OWN, F64 + 12, 1, inv, inv, False)
    A.extend(mf[:3])
    A('s_waitcnt lgkmcnt(0)')
    common.sw_arrive(A, VFW, gen, TMP)
    A.extend(mf[3:6])
    common.sw_wait(A, name, VFP, gen, TMP, n=2)
    for q in range(4): A(f'ds_read_b128 {v(OTH + 4*q, 4)}, {v(VP)} offset:{1024*q}')
    A.extend(mf[6:])
    A('s_waitcnt lgkmcnt(0)')
    common.sw_arrive(A, VFW, gen + 1, TMP)
    A.extend(cstage(OTH, F64 + 24, 0, inv, inv, False) + cstage(OTH, F64 + 36, 1, inv, inv, False))

def sf_compute(A, vm, name, sc=''):
    A(f'''v_and_b32 v1, 31, v0
          v_lshl_add_u32 v1, v1, 7, {s(S_LB)}
          v_bfe_u32 v12, v0, 1, 3
          v_lshrrev_b32 v13, 5, v0
          v_xor_b32 v12, v12, v13
          s_cmp_eq_u32 {s(S_K)}, 320
          s_cselect_b32 s28, 4, 0
          v_xor_b32 v13, s28, v12''')
    for ks in range(2):
        A(f'v_xor_b32 v14, {2*ks}, v13\nv_lshl_add_u32 {v(8+ks)}, v14, 4, v1')
        A(f'v_xor_b32 v14, {4 + 2*ks}, v12\nv_lshl_add_u32 {v(10+ks)}, v14, 4, v1')
    A(f'''s_cmp_eq_u32 {s(S_K)}, 320
          s_cselect_b32 s25, 0, {s(S_K)}
          s_cselect_b32 s31, {320*US}, 0
          s_mul_i32 s29, s25, 6554
          s_lshr_b32 s29, s29, 16            ; k / 10
          s_mul_i32 s30, s29, 10
          s_sub_u32 s30, s25, s30
          s_lshl_b32 s30, s30, 5
          s_add_u32 s30, s30, s29
          s_mul_i32 s30, s30, {US}
          s_add_u32 s30, s30, s31
          s_lshl_b32 s29, {s(S_T)}, 11
          s_add_u32 s30, s30, s29
          s_add_u32 s26, s30, {WS_U}
          s_add_u32 s27, s26, {320*US}
          v_bfe_u32 v1, v0, 1, 4
          v_lshlrev_b32 v1, 7, v1
          v_and_b32 v12, 1, v0
          v_lshl_add_u32 v1, v12, 5, v1
          v_lshrrev_b32 v12, 5, v0
          v_lshl_add_u32 {v(VST)}, v12, 4, v1
          s_waitcnt vmcnt({vm.count("y", "c32", "tw1")})''')
    for part in range(2):
        for ks in range(2): A(f'ds_read_b128 {v(fr(OTH, part, ks), 4)}, {v(8 + 2*part + ks)}')
    A(f's_cmp_eq_u32 s25, 0\ns_waitcnt lgkmcnt(0)\ns_cbranch_scc0 {name}_cplx')
    for r in range(8): A(f'v_mov_b32 {v(fr(OTH, 1, 0) + r)}, 0')
    A(f's_nop 1\n{name}_cplx:')
    A.extend(cstage(OTH, C32, 0, False, True, True) + cstage(OTH, C32 + 12, 1, False, True, False))
    A('s_nop 10')
    for rg in range(4): cmul(A, rg, TW1 + 8 * rg, TW1 + 8 * rg + 4, False)
    A(f's_waitcnt vmcnt({vm.count("f64")})')
    exchange_stage(A, f'{name}_x1', 1, False)
    A(f's_waitcnt vmcnt({vm.count("wt")})')
    for rg in range(4):
        b = 8 + 8 * (rg & 1)
        for jj in range(4):
            A(f'v_lshlrev_b32 {v(b + jj)}, 16, {v(WTR + 4*rg + jj)}\nv_and_b32 {v(b + 4 + jj)}, 0xffff0000, {v(WTR + 4*rg + jj)}')
        if rg == 0: A('s_nop 3')
        cmul(A, rg, b, b + 4, True)
    common.sw_wait(A, f'{name}_x2p', VFP, 2, TMP, n=2)
    exchange_stage(A, f'{name}_x2', 3, True)
    A(f's_waitcnt vmcnt({vm.count("tw2")})\ns_nop 9')
    for rg in range(4): cmul(A, rg, TW2 + 8 * rg, TW2 + 8 * rg + 4, True)
    A('s_nop 0')
    A.extend(cstage(OWN, C32, 0, True, False, True) + cstage(OWN, C32 + 12, 1, True, False, False))
    def pack_store(part):
        d = DIM if part else DRE
        for c in range(2):
            o = OTH + 8 * part + 4 * c
            for q in range(4): A(f'v_cvt_pk_bf16_f32 {v(o + q)}, {v(d + 8*c + 2*q)}, {v(d + 8*c + 2*q + 1)}')
            A(f'buffer_store_dwordx4 {v(o, 4)}, {v(VST)}, {s(S_WS,4)}, {"s27" if part else "s26"} offen offset:{64*c}{sc}')
    A('s_nop 10')
    pack_store(0)
    A(f's_cmp_eq_u32 s25, 0\ns_cbranch_scc1 {name}_noim')
    pack_store(1)
    A(f'{name}_noim:')

def u_signal(A):
    A(f'''s_and_b32 s28, {s(S_K)}, 15
          s_lshl_b32 s28, s28, 7
          s_add_u32 s28, s28, {FL_U}
          v_lshlrev_b32 v8, 11, v0
          v_mov_b32 v9, 1
          s_waitcnt vmcnt(0)
          s_mov_b64 exec, 0xff
          buffer_atomic_add v9, v8, {s(S_WS,4)}, s28 offen sc1
          s_mov_b64 exec, -1''')

TR, ACCS, UF = 152, 72, 56
XR = 40
VXO, VXO2, VUR, VUD = 8, 9, 10, 12

def x_loads(A, vm):
    A(f'''v_and_b32 v16, 3, v0
          v_bfe_u32 v17, v0, 2, 1
          v_lshl_add_u32 v16, v17, 3, v16
          v_bfe_u32 v17, v0, 3, 1
          v_lshl_add_u32 v16, v17, 2, v16
          s_lshr_b32 s28, s19, 1
          s_lshl_b32 s28, s28, 4
          v_add_u32 v16, s28, v16               ; s1
          s_lshl_b32 s28, s17, 1
          s_and_b32 s29, s19, 1
          s_add_u32 s28, s28, s29
          v_lshl_add_u32 v16, v16, 6, s28
          v_mul_u32_u24 v16, 1280, v16
          s_mul_i32 s28, s18, 160
          v_lshrrev_b32 v17, 4, v0
          v_lshl_add_u32 v18, v17, 4, v16
          v_add_u32 {v(VXO)}, s28, v18
          v_lshl_add_u32 v18, v17, 3, v16
          v_add_u32 {v(VXO2)}, s28, v18''')
    A(f'buffer_load_dwordx4 {v(XR, 4)}, {v(VXO)}, {s(S_X,4)}, 0 offen'); vm.issue('x')
    A(f'buffer_load_dwordx4 {v(XR+4, 4)}, {v(VXO)}, {s(S_X,4)}, 0 offen offset:64'); vm.issue('x')
    A(f'buffer_load_dwordx2 {v(XR+8, 2)}, {v(VXO2)}, {s(S_X,4)}, 0 offen offset:128'); vm.issue('x')

def tgen(A, mid=None):
    R = lambda t, j: 72 + 16 * t + 8 * (j & 1)
    N, K1, K10, T1 = 24, 29, 34, 56
    A0, SP = 22, 23
    F5 = range(5)
    A(f'''s_lshr_b32 s30, s19, 1              ; part
          s_mul_i32 s34, s30, 0x3e800000
          s_lshl_b32 s30, s30, 31
          s_and_b32 s29, s19, 1
          s_mul_i32 s31, s29, 5
          s_cmp_eq_u32 s29, 0
          s_cselect_b64 s[32:33], 0xffff, 0
          s_mov_b32 s35, {fhex(1.0/640)}
          s_mul_i32 s28, s18, 80
          v_lshlrev_b32 {v(SP)}, 31, v0
          v_and_b32 {v(SP)}, s30, {v(SP)}
          v_xor_b32 {v(SP)}, 0.5, {v(SP)}
          v_lshrrev_b32 {v(A0)}, 4, v0
          v_mul_u32_u24 {v(A0)}, 80, {v(A0)}
          v_add_u32 {v(A0)}, s31, {v(A0)}
          v_cvt_f32_u32 {v(A0)}, {v(A0)}
          v_bfe_u32 {v(T1)}, v0, 2, 2
          v_and_b32 {v(T1+1)}, 3, v0
          v_lshl_add_u32 {v(T1)}, {v(T1)}, 3, {v(T1+1)}
          v_add_u32 {v(T1)}, s28, {v(T1)}
          v_cvt_f32_u32 {v(N)}, {v(T1)}
          v_and_b32 {v(T1)}, 15, v0
          s_add_u32 s28, s28, 64
          v_add_u32 {v(T1)}, s28, {v(T1)}
          v_cvt_f32_u32 {v(N+4)}, {v(T1)}
          v_add_f32 {v(N+1)}, 4.0, {v(N)}
          v_add_f32 {v(N+2)}, {fhex(32.0)}, {v(N)}
          v_add_f32 {v(N+3)}, {fhex(36.0)}, {v(N)}''')
    for t in F5: A(f'v_mul_f32 {v(R(t, 0))}, {v(A0)}, {v(N+t)}')
    for t in F5: A(f'v_mul_f32 {v(T1+t)}, s35, {v(R(t, 0))}')
    for t in F5: A(f'v_mul_f32 {v(K10+t)}, {fhex(1.0/64)}, {v(N+t)}')
    for t in F5: A(f'v_floor_f32 {v(T1+t)}, {v(T1+t)}')
    for t in F5: A(f'v_mul_f32 {v(K1+t)}, s35, {v(N+t)}')
    for t in F5: A(f'v_fmac_f32 {v(R(t, 0))}, {fhex(-640.0)}, {v(T1+t)}')
    for t in F5: A(f'v_fract_f32 {v(K10+t)}, {v(K10+t)}')
    for t in F5: A(f'v_mul_f32 {v(R(t, 0))}, s35, {v(R(t, 0))}')
    for t in F5: A(f'v_add_f32 {v(R(t, 0))}, s34, {v(R(t, 0))}')
    for t in F5: A(f'v_add_f32 {v(R(t, 1))}, {v(R(t, 0))}, {v(K1+t)}')
    for t in F5: A(f'v_add_f32 {v(R(t, 0)+1)}, {v(R(t, 0))}, {v(K10+t)}')
    for t in F5: A(f'v_add_f32 {v(R(t, 1)+1)}, {v(R(t, 1))}, {v(K10+t)}')
    for r in [K10 + t for t in F5] + [R(t, j) + e for t in F5 for j in (0, 1) for e in (0, 1)] + [K1 + t for t in F5]:
        A(f'v_cos_f32 {v(r)}, {v(r)}')
    for t in F5: A(f'v_add_f32 {v(K10+t)}, {v(K10+t)}, {v(K10+t)}')
    for t in F5: A(f'v_add_f32 {v(K1+t)}, {v(K1+t)}, {v(K1+t)}')
    if mid: mid()
    for e in range(2, 8):
        for t in F5:
            for j in (0, 1): A(f'v_fma_f32 {v(R(t, j)+e)}, {v(K10+t)}, {v(R(t, j)+e-1)}, -{v(R(t, j)+e-2)}')
    for t in F5: A(f'v_cndmask_b32 {v(T1+t)}, {v(R(t, 0))}, {v(SP)}, s[32:33]')
    for j in range(5):
        for t in F5:
            row = R(t, j)
            if j >= 2:
                for e in range(8): A(f'v_fma_f32 {v(row+e)}, {v(K1+t)}, {v(R(t, j-1)+e)}, -{v(row+e)}')
            for q in range(4): A(f'v_cvt_pk_bf16_f32 {v(TR + 20*t + 4*j + q)}, {v(T1+t if (j == 0 and q == 0) else row+2*q)}, {v(row+2*q+1)}')

def u_setup(A):
    A(f'''v_lshrrev_b32 v16, 3, v0
          v_mul_u32_u24 v16, {US}, v16
          v_bfe_u32 v17, v0, 1, 2
          v_bfe_u32 v18, v0, 4, 1
          v_xor_b32 v17, v17, v18
          v_and_b32 v18, 1, v0
          v_lshl_add_u32 v16, v18, 4, v16
          v_lshl_add_u32 {v(VUD)}, v17, 5, v16
          v_xor_b32 v17, 2, v17
          v_lshl_add_u32 {v(VUD+1)}, v17, 5, v16
          v_add_u32 {v(VUD+1)}, {8*US}, {v(VUD+1)}
          s_mul_i32 s26, s19, {160*US}
          s_lshl_b32 s28, s17, 7
          s_add_u32 s26, s26, s28
          s_add_u32 s26, s26, {WS_U}
          v_lshrrev_b32 v16, 4, v0             ; g
          v_bfe_u32 v17, v0, 2, 2              ; r
          v_lshl_add_u32 v18, v16, 3, v17
          v_lshlrev_b32 v18, 7, v18
          v_and_b32 v16, 1, v16
          v_lshrrev_b32 v17, 1, v17
          v_lshl_add_u32 v16, v16, 1, v17      ; f = b1 + 2 b3
          v_lshl_add_u32 v18, v16, 5, v18
          v_and_b32 v16, 3, v0
          v_lshl_add_u32 v18, v16, 3, v18
          v_add_u32 {v(VUR)}, {s(S_LB)}, v18
          v_and_b32 v16, 15, v0
          v_lshlrev_b32 v14, 7, v16
          v_cmp_eq_u32 vcc, 0, v16
          v_mov_b32 v15, 40
          s_and_b32 s27, s2, 7
          s_lshl_b32 s27, s27, 11
          s_add_u32 s27, s27, {FL_U}
          v_cndmask_b32 v15, v15, 42, vcc''')

def u_wait(A, name, sleep=6):
    A(f'''v_mov_b32 v21, {L_FLG + 48}
          s_cmp_lg_u32 s19, 0
          s_cbranch_scc1 {name}_l
          {name}:
          buffer_load_dword v16, v14, {s(S_WS,4)}, s27 offen sc1
          s_waitcnt vmcnt(0)
          v_cmp_eq_u32 vcc, v16, v15
          s_cmp_eq_u64 vcc, -1
          s_cbranch_scc1 {name}_s
          s_sleep {sleep}
          {common.AGAIN(name)}
          {name}_s:
          ds_write_b32 v21, v15
          s_branch {name}_ok
          {name}_l:
          ds_read_b32 v16, v21
          s_waitcnt lgkmcnt(0)
          v_readfirstlane_b32 s28, v16
          s_cmp_lg_u32 s28, 0
          s_cbranch_scc1 {name}_ok
          s_sleep 1
          {common.AGAIN(name + '_l')}
          {name}_ok:''')

def idft(A, name, sc=''):
    vm = VM()
    A(f's_mul_i32 s25, s19, 15360\ns_add_u32 s25, s25, {L_BIG}')
    def dma(jj):
        for i in range(4):
            base = (s(S_LB), 4096 * jj) if jj < 2 else ('s25', 4096 * (jj - 2))
            A(f's_add_u32 m0, {base[0]}, {base[1] + 1024*i}\ns_add_u32 s29, s26, {(32*jj + 16*(i >> 1)) * US}\nbuffer_load_dwordx4 {v(VUD + (i & 1))}, {s(S_WS,4)}, s29 offen{sc} lds')
            vm.issue(jj)
    dma(0); dma(1)
    A(f'v_mov_b32 v21, {L_FLG}')
    common.sw_wait(A, f'{name}_big', 21, 20, TMP)
    dma(2); dma(3); dma(4)
    A(f's_sub_u32 s28, s25, {s(S_LB)}')
    for rg in range(1, 4): A(f'v_xor_b32 {v(15 + rg)}, {32*rg}, {v(VUR)}')
    def rd(jj, rg):
        b = UF + 4 * (rg & 1) + 8 * (rg >> 1)
        return [f'ds_read_b64_tr_b16 {v(UF + 4*rg + 2*q, 2)}, {v(VUR if rg == 0 else 15 + rg)} offset:{4096*(jj if jj < 2 else jj - 2) + 512*q}' for q in range(2)]
    A(f's_waitcnt vmcnt({vm.count(0)})')
    for rg in range(4): A.extend(rd(0, rg))
    for jj in range(5):
        for rg in range(4):
            A(f's_waitcnt lgkmcnt({6 if jj < 4 else 6 - 2*rg})')
            for t in range(5):
                d = ACCS + 20 * rg + 4 * t
                A(f'{MF16} {v(d, 4)}, {v(TR + 20*t + 4*jj, 4)}, {v(UF + 4*rg, 4)}, {"0" if jj == 0 else v(d, 4)}')
                if t == 3 and rg == 0 and jj < 4:
                    A(f's_waitcnt vmcnt({vm.count(jj + 1)})')
                    if jj == 1:
                        for r in (VUR, 16, 17, 18): A(f'v_add_u32 {v(r)}, s28, {v(r)}')
            if jj < 4: A.extend(rd(jj + 1, rg))

def reduce_final(A, name):
    SUM, RD, XF, GT = 152, 172, 24, 232
    VW, VR = 16, 17
    A(f'v_add_u32 {v(VW)}, s25, {v(VL)}')
    for d in range(1, 4):
        A(f's_sub_u32 s28, s19, {d}\ns_and_b32 s28, s28, 3\ns_mul_i32 s28, s28, 15360\ns_add_u32 s28, s28, {L_BIG + 5120*(d-1)}\nv_add_u32 {v(VR + d)}, s28, {v(VL)}')
    for f in range(4):
        if f < 3: A(f's_cmp_lg_u32 s19, {f}\ns_cbranch_scc1 {name}_w{f+1}')
        for d in sorted(range(1, 4), key=lambda d: (f + d) & 3):
            for t in range(5):
                A(f'ds_write_b128 {v(VW)}, {v(ACCS + 20*((f + d) & 3) + 4*t, 4)} offset:{1024*(5*(d-1) + t)}')
        for r in range(20): A(f'v_mov_b32 {v(SUM + r)}, {v(ACCS + 20*f + r)}')
        if f < 3: A(f's_branch {name}_wd\n{name}_w{f+1}:')
    A(f'{name}_wd:')
    A(f's_mul_i32 s28, s19, 5120\ns_add_u32 s28, s28, {L_GATE}\nv_add_u32 v22, s28, {v(VL)}\nv_add_u32 v23, 16, {v(VFW)}\nv_mov_b32 v21, {L_FLG + 16}')
    A('s_waitcnt lgkmcnt(0)')
    common.sw_arrive(A, VFW, 5, 12)
    for r in range(10): A(f'v_lshlrev_b32 {v(72 + 2*r)}, 16, {v(XR + r)}\nv_and_b32 {v(72 + 2*r + 1)}, 0xffff0000, {v(XR + r)}')
    common.sw_wait(A, f'{name}_r1', 21, 5, 12)
    for d in range(1, 4):
        for t in range(5): A(f'ds_read_b128 {v(RD + 20*(d-1) + 4*t, 4)}, {v(VR + d)} offset:{1024*t}')
    for d in range(3):
        A(f's_waitcnt lgkmcnt({10 - 5*d})')
        for r in range(20): A(f'v_add_f32 {v(SUM + r)}, {v(SUM + r)}, {v(RD + 20*d + r)}')
    A(f'''{name}_gw:
          ds_read_b32 v12, v23
          s_waitcnt lgkmcnt(0)
          v_readfirstlane_b32 s28, v12
          s_cmp_lg_u32 s28, 0
          s_cbranch_scc1 {name}_gwo
          {common.AGAIN(name + '_gw')}
          {name}_gwo:''')
    for t in range(5): A(f'ds_read_b128 {v(GT + 4*t, 4)}, v22 offset:{1024*t}')
    for t in range(5):
        A(f's_waitcnt lgkmcnt({4 - t})')
        for r in range(4 * t, 4 * t + 4): A(f'v_fmac_f32 {v(72 + r)}, {v(SUM + r)}, {v(GT + r)}')
        for r in range(2 * t, 2 * t + 2): A(f'v_cvt_pk_bf16_f32 {v(XR + r)}, {v(72 + 2*r)}, {v(72 + 2*r + 1)}')
        if t == 1: A(f'buffer_store_dwordx4 {v(XR, 4)}, {v(VXO)}, {s(S_O,4)}, 0 offen')
        if t == 3: A(f'buffer_store_dwordx4 {v(XR+4, 4)}, {v(VXO)}, {s(S_O,4)}, 0 offen offset:64')
        if t == 4: A(f'buffer_store_dwordx2 {v(XR+8, 2)}, {v(VXO2)}, {s(S_O,4)}, 0 offen offset:128')
```

```python
from asmlib import *
from layout import *

DA = 64
PA, PB = 128, 160
WTR = 192
TB = (32, 44)
TWB = (8, 16)
TMP = 24
VL, VYA, VST = 2, 3, 7
S_WS = 12
def dre(t): return DA + 32 * t
def dim(t): return DA + 32 * t + 16
def fr(base, part, ks): return base + 16 * part + 4 * ks
MF = 'v_mfma_f32_32x32x16_bf16'

def load_tables(A, vm, tab_lds, nwaves, wave_sgpr, label):
    A(f'''s_getpc_b64 s[36:37]
          {label}_pc:
          s_add_u32 s36, s36, {label}-{label}_pc
          s_addc_u32 s37, s37, 0
          s_mov_b32 s38, {TAB_SIZE}
          s_mov_b32 s39, 0x20000
          s_lshl_b32 s28, {wave_sgpr}, 10
          v_lshl_add_u32 v1, v0, 4, s28
          s_add_u32 s28, s28, {tab_lds}''')
    n = -(-62 // nwaves)
    for i in range(n):
        last_partial = (i + 1) * nwaves > 62
        if last_partial:
            A(f's_cmp_ge_u32 {wave_sgpr}, {62 - i * nwaves}\ns_cbranch_scc1 {label}_skip')
        A(f's_add_u32 m0, s28, {1024 * nwaves * i}\ns_mov_b32 s29, {1024 * nwaves * i}\nbuffer_load_dwordx4 v1, s[36:39], s29 offen lds')
        if last_partial:
            A(f'{label}_skip:')
        else:
            vm.issue('tab')

def issue_loads(A, vm, s_k, s_ylds, sc=''):
    A(f'''s_cmp_eq_u32 {s_k}, 320
          s_cselect_b32 s28, 0, {s_k}
          s_mul_i32 s28, s28, {YS}
          s_add_u32 s28, s28, {WS_Y}
          v_lshrrev_b32 v1, 4, v0
          v_and_b32 v7, 7, v0
          v_xor_b32 v1, v1, v7
          v_lshlrev_b32 v1, 4, v1
          v_lshrrev_b32 v7, 3, v0
          v_lshl_add_u32 v1, v7, 7, v1
          v_xor_b32 v7, 64, v1''')
    for i in range(8):
        A(f's_add_u32 m0, {s_ylds}, {1024*i}\ns_add_u32 s29, s28, {1024*i}\nbuffer_load_dwordx4 {"v7" if i & 1 else "v1"}, {s(S_WS,4)}, s29 offen{sc} lds')
        vm.issue('y')
    A(f'''s_mul_i32 s28, {s_k}, {YS}
          s_add_u32 s28, s28, {WS_WT}
          s_add_u32 s29, s28, 4096
          v_lshlrev_b32 v1, 4, v0''')
    for q in range(8):
        A(f'buffer_load_dwordx4 {v(WTR + 4*q, 4)}, v1, {s(S_WS,4)}, {"s29" if q >= 4 else "s28"} offen offset:{1024 * (q & 3)}{sc}')
        vm.issue('wt')

def cread(buf, off):
    return [f'ds_read_b128 {v(TB[buf] + 4*i, 4)}, {v(VL)} offset:{off + 1024*i}' for i in range(3)]

def stage(A, groups):
    for n, (off, fn) in enumerate(groups):
        b = n & 1
        nxt = cread(b ^ 1, groups[n + 1][0]) if n + 1 < len(groups) else []
        A('s_waitcnt lgkmcnt(0)')
        mf = fn(TB[b], TB[b] + 4, TB[b] + 8)
        for i, m in enumerate(mf):
            A(m)
            if i < len(nxt): A(nxt[i])

def cmul(A, t, rg, src_c, src_s, conj, dst):
    P = lambda r: v(r, 2)
    R, M = dre(t) + 4 * rg, dim(t) + 4 * rg
    o = TMP
    ng = ' neg_lo:[0,1,0] neg_hi:[0,1,0]'
    for q in (0, 2): A(f'v_pk_mul_f32 {P(o+q)}, {P(R+q)}, {P(src_c+q)}')
    for q in (0, 2): A(f'v_pk_mul_f32 {P(o+4+q)}, {P(M+q)}, {P(src_c+q)}')
    for q in (0, 2): A(f'v_pk_fma_f32 {P(o+q)}, {P(M+q)}, {P(src_s+q)}, {P(o+q)}' + (ng if conj else ''))
    for q in (0, 2): A(f'v_pk_fma_f32 {P(o+4+q)}, {P(R+q)}, {P(src_s+q)}, {P(o+4+q)}' + ('' if conj else ng))
    ks = 2 * t + (rg >> 1); d = 2 * (rg & 1)
    for q in (0, 1): A(f'v_cvt_pk_bf16_f32 {v(fr(dst, 0, ks) + d + q)}, {v(o+2*q)}, {v(o+2*q+1)}')
    for q in (0, 1): A(f'v_cvt_pk_bf16_f32 {v(fr(dst, 1, ks) + d + q)}, {v(o+4+2*q)}, {v(o+4+2*q+1)}')

def twiddle(A, tab, conj, dst, first_c):
    def rd(n):
        b = TWB[n & 1]
        return [f'ds_read_b128 {v(b, 4)}, {v(VL)} offset:{tab + 2048*n}', f'ds_read_b128 {v(b+4, 4)}, {v(VL)} offset:{tab + 2048*n + 1024}']
    A.extend(rd(0))
    for n in range(8):
        if n < 7:
            A.extend(rd(n + 1)); A('s_waitcnt lgkmcnt(2)')
        else:
            A.extend(cread(0, first_c)); A('s_waitcnt lgkmcnt(3)')
        if n == 0: A('s_nop 7')
        cmul(A, n >> 2, n & 3, TWB[n & 1], TWB[n & 1] + 4, conj, dst)

def compute(A, vm, s_k, s_ylds, tab_lds, name, sc='', stamp=lambda i: None):
    A(f'''v_lshlrev_b32 {v(VL)}, 4, v0
          v_add_u32 {v(VL)}, {tab_lds}, {v(VL)}
          v_and_b32 v1, 31, v0
          v_lshl_add_u32 v1, v1, 7, {s_ylds}
          v_bfe_u32 v7, v0, 1, 3
          v_lshrrev_b32 v8, 5, v0
          v_xor_b32 v7, v7, v8
          s_cmp_eq_u32 {s_k}, 320
          s_cselect_b32 s28, 4, 0
          v_xor_b32 v8, s28, v7''')
    for ks in range(2):
        A(f'v_xor_b32 v9, {2*ks}, v8\nv_lshl_add_u32 {v(VYA+ks)}, v9, 4, v1')
        A(f'v_xor_b32 v9, {4 + 2*ks}, v7\nv_lshl_add_u32 {v(VYA+2+ks)}, v9, 4, v1')
    A.extend(cread(0, TAB_F32)); A.extend(cread(1, TAB_F32 + 3072))
    for t in range(2):
        for part in range(2):
            for ks in range(2):
                A(f'ds_read_b128 {v(fr(PA, part, 2*t + ks), 4)}, {v(VYA + 2*part + ks)} offset:{4096*t}')
    A(f'''s_cmp_eq_u32 {s_k}, 320
          s_cselect_b32 s28, 0, {s_k}
          s_cselect_b32 s31, {320*US}, 0
          s_mul_i32 s29, s28, 6554
          s_lshr_b32 s29, s29, 16            ; k / 10
          s_mul_i32 s30, s29, 10
          s_sub_u32 s30, s28, s30
          s_lshl_b32 s30, s30, 5
          s_add_u32 s30, s30, s29
          s_mul_i32 s30, s30, {US}
          s_add_u32 s30, s30, s31
          s_add_u32 s30, s30, {WS_U}
          s_add_u32 s31, s30, {320*US}
          v_bfe_u32 v1, v0, 1, 4
          v_lshlrev_b32 v1, 7, v1
          v_and_b32 v8, 1, v0
          v_lshl_add_u32 v1, v8, 5, v1
          v_lshrrev_b32 v8, 5, v0
          v_lshl_add_u32 {v(VST)}, v8, 4, v1
          s_cmp_eq_u32 s28, 0
          s_waitcnt lgkmcnt(0)
          s_cbranch_scc0 {name}_cplx''')
    for r in range(16): A(f'v_mov_b32 {v(fr(PA, 1, 0) + r)}, 0')
    A(f's_nop 1\n{name}_cplx:')
    for t in range(2):
        for ks in range(2):
            C, S_, N = TB[ks], TB[ks] + 4, TB[ks] + 8
            yr, yi = fr(PA, 0, 2*t + ks), fr(PA, 1, 2*t + ks)
            c = lambda d: '0' if ks == 0 else v(d, 16)
            A(f'{MF} {v(dre(t), 16)}, {v(yr, 4)}, {v(C, 4)}, {c(dre(t))}')
            A(f'{MF} {v(dim(t), 16)}, {v(yi, 4)}, {v(C, 4)}, {c(dim(t))}')
            A(f'{MF} {v(dre(t), 16)}, {v(yi, 4)}, {v(S_, 4)}, {v(dre(t), 16)}')
            A(f'{MF} {v(dim(t), 16)}, {v(yr, 4)}, {v(N, 4)}, {v(dim(t), 16)}')
    twiddle(A, TAB_TW1, False, PB, TAB_F64)
    stamp(3)
    def g64(src, t, ks, inv):
        def fn(C, S_, N):
            zr, zi = fr(src, 0, ks), fr(src, 1, ks)
            c = lambda d: '0' if ks == 0 else v(d, 16)
            ops = [(dre(t), C, zr, c(dre(t))), (dim(t), C, zi, c(dim(t))),
                   (dre(t), N if inv else S_, zi, v(dre(t), 16)), (dim(t), S_ if inv else N, zr, v(dim(t), 16))]
            if inv: return [f'{MF} {v(d, 16)}, {v(z, 4)}, {v(k, 4)}, {cc}' for d, k, z, cc in ops]
            return [f'{MF} {v(d, 16)}, {v(k, 4)}, {v(z, 4)}, {cc}' for d, k, z, cc in ops]
        return (TAB_F64 + 3072 * (4 * t + ks), fn)
    A('s_nop 1')
    stage(A, [g64(PB, t, ks, False) for t in range(2) for ks in range(4)])
    A.extend(cread(0, TAB_F64))
    A(f's_waitcnt vmcnt({vm.count("wt")})')
    for n in range(8):
        b = TWB[n & 1]
        for jj in range(4):
            A(f'v_lshlrev_b32 {v(b + jj)}, 16, {v(WTR + 4*n + jj)}\nv_and_b32 {v(b + 4 + jj)}, 0xffff0000, {v(WTR + 4*n + jj)}')
        if n == 0: A('s_nop 4')
        cmul(A, n >> 2, n & 3, b, b + 4, True, PA)
    stamp(4)
    A('s_nop 1')
    stage(A, [g64(PA, t, ks, True) for t in range(2) for ks in range(4)])
    twiddle(A, TAB_TW2, True, PB, TAB_F32)
    A.extend(cread(1, TAB_F32 + 3072))
    A('s_waitcnt lgkmcnt(0)')
    stamp(5)
    for t in range(2):
        for ks in range(2):
            C, S_, N = TB[ks], TB[ks] + 4, TB[ks] + 8
            xr, xi = fr(PB, 0, 2*t + ks), fr(PB, 1, 2*t + ks)
            c = lambda d: '0' if ks == 0 else v(d, 16)
            A(f'{MF} {v(dre(t), 16)}, {v(C, 4)}, {v(xr, 4)}, {c(dre(t))}')
            A(f'{MF} {v(dim(t), 16)}, {v(C, 4)}, {v(xi, 4)}, {c(dim(t))}')
            A(f'{MF} {v(dre(t), 16)}, {v(N, 4)}, {v(xi, 4)}, {v(dre(t), 16)}')
            A(f'{MF} {v(dim(t), 16)}, {v(S_, 4)}, {v(xr, 4)}, {v(dim(t), 16)}')
    def pack_store(t, part):
        d = dre(t) if part == 0 else dim(t)
        for c in range(2):
            o = PA + 16 * part + 8 * t + 4 * c
            for q in range(4): A(f'v_cvt_pk_bf16_f32 {v(o + q)}, {v(d + 8*c + 2*q)}, {v(d + 8*c + 2*q + 1)}')
            A(f'buffer_store_dwordx4 {v(o, 4)}, {v(VST)}, {s(S_WS,4)}, {"s31" if part else "s30"} offen offset:{2048*t + 64*c}{sc}')
    A('s_nop 3')
    pack_store(0, 0)
    A('s_nop 1')
    pack_store(1, 0)
    A(f's_cmp_eq_u32 s28, 0\ns_cbranch_scc1 {name}_noim')
    pack_store(0, 1); pack_store(1, 1)
    A(f'{name}_noim:')
```

```python
import sys
sys.path.insert(0, 'dev')
from asmlib import *
from layout import *
import common, f1, g1, p2
from build1 import HEADER
NAME = 'recurrent_scan__spectral_gfnet__glu_gated_geglu__prompt_kernel'
SO, SI = ' sc0 sc1', ' sc1'
WS = 's[12:15]'

def ws_srd(A):
    A(f's_mov_b32 s12, s58\ns_mov_b32 s13, s59\ns_mov_b32 s14, {WS_SIZE}\ns_mov_b32 s15, 0x20000')
def p2_ids(A):
    A('''s_and_b32 s28, s2, 7
         s_lshr_b32 s29, s2, 3
         s_and_b32 s18, s29, 7
         s_lshr_b32 s29, s29, 3
         s_lshl_b32 s17, s28, 2
         s_add_u32 s17, s17, s29
         s_and_b32 s19, s16, 3''')
def replica(A, dst, line):
    A(f's_and_b32 {dst}, s2, 7\ns_lshl_b32 {dst}, {dst}, 10\ns_add_u32 {dst}, {dst}, {FL_R + 128*line}')

def kernel(prof=False, pf=True):
    A = Asm()
    st = lambda i: common.stamp(A, i, prof)
    def stw(i):
        st(i)
        if prof: A('s_waitcnt lgkmcnt(0)')
    def fin():
        if prof: A('s_waitcnt vmcnt(0)')
        st(14); common.stamp_rt(A, 15, prof); common.stamp_flush(A, prof, 0)
        A('s_endpgm')
    common.stamp_init(A, prof)
    common.stamp_rt(A, 0, prof); st(1)
    common.entry(A)
    A(f'''s_cmp_ge_u32 s2, 256
         s_cbranch_scc1 k_done
         v_lshlrev_b32 v1, 2, v0
         v_add_u32 v1, {p2.L_FLG}, v1
         v_mov_b32 v2, 0
         ds_write_b32 v1, v2
         s_cmp_lt_u32 s2, 64
         s_cbranch_scc1 k_f
         s_sub_u32 s34, s2, 64
         s_and_b32 s28, s2, 7
         s_lshr_b32 s29, s34, 3
         s_mul_i32 s30, s29, 43
         s_lshr_b32 s30, s30, 7
         s_mul_i32 s31, s30, 3
         s_sub_u32 s31, s29, s31
         s_lshr_b32 s17, s28, 2
         s_lshl_b32 s17, s17, 3
         s_add_u32 s17, s17, s30
         s_and_b32 s18, s28, 3
         s_mul_i32 s18, s18, 3
         s_add_u32 s18, s18, s31
         s_and_b32 s19, s16, 3
         s_cmp_lt_u32 s16, 4
         s_cbranch_scc1 k_gc''')
    A.block('k_gl')
    g1.loader_addr(A)
    A('s_waitcnt lgkmcnt(0)'); ws_srd(A); st(2)
    def wait_aux(A):
        A('s_cmp_lg_u32 s19, 0\ns_cbranch_scc1 k_aux_ok')
        common.wait_cleared(A, 'k_clr1', 41, 42)
        A('v_mov_b32 v43, 64')
        replica(A, 's29', 5)
        common.poll_lines(A, 'k_aux', WS, 's29', 41, 43, 42, 8)
    g1.loader(A, 'k', pf=pf, wait_aux=wait_aux); st(3)
    A('s_branch k_p2f')
    A.block('k_gc')
    g1.compute_setup(A)
    A('s_waitcnt lgkmcnt(0)'); ws_srd(A)
    A(f'''s_cmp_lg_u32 s2, 64
          s_cbranch_scc1 k_noclr
          s_cmp_lg_u32 s16, 0
          s_cbranch_scc1 k_noclr
          v_lshlrev_b32 v30, 7, v0
          v_mov_b32 v31, 0
          s_mov_b32 s28, {WS_FL}''')
    for i in range(4): A(f'buffer_store_dword v31, v30, {WS}, s28 offen{SO}\ns_add_u32 s28, s28, 8192')
    A(f'''v_mov_b32 v30, 1
          s_waitcnt vmcnt(0)
          global_store_dword v31, v30, s[56:57] offset:128{SO}
          k_noclr:''')
    replica(A, 's61', 4)
    A('v_mov_b32 v16, 0\nv_mov_b32 v18, 64'); st(2)
    g1.mainloop(A, 'g1', sc=SI, stamp=lambda: st(3), more=[f'buffer_load_dword v17, v16, {WS}, s61 offen sc1']); st(4)
    g1.ext_apply(A)
    A(f's_lshl_b32 s60, s17, 1\ns_lshr_b32 s28, s19, 1\ns_add_u32 s60, s60, s28\ns_lshl_b32 s60, s60, 7\ns_add_u32 s60, s60, {FL_H}')
    p2_ids(A); p2.g_setup(A)
    A(f'v_mov_b32 v19, 1\nds_write_b32 {v(p2.VFO)}, v19 offset:64\nv_cmp_eq_u32 vcc, v17, v18\ns_cbranch_vccnz k_wd1_ok')
    common.poll_lines(A, 'k_wd1', WS, 's61', 16, 18, 17, 4)
    vm = VM()
    pre = [d for g in range(6) for d in p2.wd_dma(g, SI)]
    def hook(n):
        if n == 4:
            A(f'v_mov_b32 v20, {p2.L_FLG + 64}')
            common.sw_wait(A, 'k_g1done', 20, 1, 24)
        k = {1: 5, 2: 5, 3: 5, 4: 5, 5: 5, 6: 5}.get(n, 0)
        for d in pre[:k]: A.extend(d)
        del pre[:k]
    g1.epilogue(A, sc=SO, hook=hook); st(5)
    assert not pre
    A(f'''v_mov_b32 v16, 0
          v_mov_b32 v17, 1
          s_waitcnt vmcnt(0)
          s_mov_b64 exec, 1
          buffer_atomic_add v17, v16, {WS}, s60 offen sc1
          s_mov_b64 exec, -1'''); st(6)
    A('s_branch k_p2g')
    A.block('k_f')
    vm = VM()
    A('''s_and_b32 s28, s2, 7
         s_lshl_b32 s17, s28, 3
         s_lshr_b32 s29, s2, 3
         s_add_u32 s17, s17, s29''')
    f1.issue_addr(A)
    A('s_waitcnt lgkmcnt(0)')
    f1.issue_x(A, vm); ws_srd(A); stw(2)
    def pre_barrier():
        A('s_cmp_lg_u32 s16, 7\ns_cbranch_scc1 k_clr2_ok')
        common.wait_cleared(A, 'k_clr2', 1, 2)
    f1.layernorm(A, vm, sc=SO, pre_barrier=pre_barrier); stw(3)
    A('s_cmp_ge_u32 s16, 4\ns_cbranch_scc1 k_fs')
    f1.dft(A, sc=SO); st(4)
    A(f's_lshl_b32 s28, s16, 7\ns_add_u32 s28, s28, {FL_R}\ns_waitcnt vmcnt(0)')
    common.signal8(A, WS, 's28', 1024, 1, 2); st(5)
    p2_ids(A); p2.g_setup(A)
    replica(A, 's61', 4)
    A('v_mov_b32 v16, 0\nv_mov_b32 v18, 64\ns_barrier')
    common.poll_lines(A, 'k_wd2', WS, 's61', 16, 18, 17, 4)
    p2.g_prefill(A, VM(), range(6), SI); st(6)
    A.block('k_p2g')
    A(f'''s_lshl_b32 s61, s17, 7
          s_add_u32 s61, s61, {FL_H}
          v_mov_b32 v16, 0
          v_mov_b32 v18, 24
          v_mov_b32 v20, {p2.L_FLG + 52}
          s_cmp_lg_u32 s19, 0
          s_cbranch_scc1 k_hl''')
    common.poll_lines(A, 'k_h', WS, 's61', 16, 18, 17, 3)
    A('''ds_write_b32 v20, v18
         s_branch k_hd
         k_hl:
         ds_read_b32 v17, v20
         s_waitcnt lgkmcnt(0)
         v_readfirstlane_b32 s28, v17
         s_cmp_lg_u32 s28, 0
         s_cbranch_scc1 k_hd
         s_sleep 1
         ''' + common.AGAIN('k_hl') + '''
         k_hd:'''); st(7)
    gst = {3: 8, 4: 9}
    p2.g_main(A, VM(), 'k', 6, sc=SI, stamp=lambda i: st(gst[i]))
    fin()
    A.block('k_fs')
    f1.stats_store(A, vm, SO)
    f1.side_issue(A, vm)
    f1.colsum_part(A, vm)
    sig = Asm(); sig(f's_mov_b32 s28, {FL_R + 128*5}\ns_waitcnt vmcnt(0)'); common.signal8(sig, WS, 's28', 1024, 1, 2)
    f1.colsum_final(A, sc=SO, after=sig.text()); stw(4)
    f1.wd_issue(A, vm); f1.wt_issue(A, vm)
    f1.side_sync(A, vm); stw(5)
    f1.wd_job(A, vm, SO)
    f1.wt_job(A, vm, SO)
    A(f's_lshl_b32 s28, s18, 2\ns_add_u32 s28, s28, {f1.L_FL}\nv_mov_b32 v8, s28\nv_mov_b32 v9, {f1.L_FL}\ns_waitcnt vmcnt(0)')
    common.sw_arrive(A, 8, 3, 10)
    A('s_cmp_lg_u32 s16, 7\ns_cbranch_scc1 k_nowdt')
    common.sw_wait(A, 'k_sw3', 9, 3, 12)
    A(f's_mov_b32 s28, {FL_R + 128*4}')
    common.signal8(A, WS, 's28', 1024, 1, 2)
    A('k_nowdt:'); st(6)
    A.block('k_p2f')
    p2_ids(A); p2.f_setup(A); p2.srds(A)
    A(f'''s_lshr_b32 s28, s19, 1
          s_lshl_b32 s28, s28, 8
          s_add_u32 {s(p2.S_K)}, s2, s28
          s_cmp_gt_u32 {s(p2.S_K)}, 320
          s_cbranch_scc1 k_idle''')
    vm = VM()
    p2.sf_consts(A, vm, 'sf_tab')
    A('s_cmp_ge_u32 s2, 64\ns_cbranch_scc1 k_nobar\ns_barrier\nk_nobar:'); st(7)
    replica(A, 's61', 0)
    A('v_min_u32 v16, 4, v0\nv_lshlrev_b32 v16, 7, v16\nv_mov_b32 v18, 64')
    common.poll_lines(A, 'k_y', WS, 's61', 16, 18, 17, 4); vm.q = []; st(8)
    p2.sf_data(A, vm, SI)
    p2.sf_compute(A, vm, 'k', sc=SO); st(9)
    A('s_mov_b32 s60, 1\ns_branch k_join\nk_idle:\ns_mov_b32 s60, 0\nk_join:')
    def mid():
        A('s_cmp_eq_u32 s60, 0\ns_cbranch_scc1 k_nosig')
        p2.u_signal(A)
        common.sw_wait(A, 'k_x4', p2.VFP, 4, 12, n=2)
        A('k_nosig:'); st(10)
        p2.x_loads(A, VM())
    p2.tgen(A, mid)
    p2.u_setup(A); st(11)
    p2.u_wait(A, 'k_uw'); st(12); A('s_waitcnt lgkmcnt(0)')
    p2.idft(A, 'k', sc=SI); st(13)
    p2.reduce_final(A, 'k')
    fin()
    A.block('k_done'); A('s_endpgm')
    n0 = A.blocks[0][0]
    for path in ([n0, 'k_gl', 'k_p2f'], [n0, 'k_gc', 'g1_loop', 'g1_loop', 'g1_epi', 'k_p2g'], [n0, 'k_f', 'f1_unit', 'f1_unit', 'f1_unit_end', 'k_p2g'], [n0, 'k_f', 'k_fs', 'k_p2f']):
        A.check(path)
    return khead(NAME) + A.text() + data_asm('sf_tab', sfft_tables()) + kdesc(NAME, 256)

def build(prof=False, **kw):
    return HEADER + '; @launch grid=(256,1,1) block=(512,1,1) lds=163840\n.amdgcn_target "amdgcn-amd-amdhsa--gfx950"\n' + kernel(prof, **kw)

if __name__ == '__main__':
    open('v4.s', 'w').write(build())
    open('v4_prof.s', 'w').write(build(prof=True))
    import rt
    for f in ('v4.s', 'v4_prof.s'):
        co = rt.build(open('dev/' + f).read(), '_chk', NAME); print(f, rt.cl.address_register_problem(co, NAME))
```

```python
import re

def v(i, n=1):
    return f'v{i}' if n == 1 else f'v[{i}:{i+n-1}]'
def a(i, n=1):
    return f'a{i}' if n == 1 else f'a[{i}:{i+n-1}]'
def s(i, n=1):
    return f's{i}' if n == 1 else f's[{i}:{i+n-1}]'

def f2u(x):
    import struct
    return struct.unpack('<I', struct.pack('<f', x))[0]
def fhex(x):
    return '0x%08x' % f2u(x)

class Asm:
    def __init__(self):
        self.blocks = []
        self.cur = None
        self.block('_start%d' % id(self), label=False)
    def block(self, name, label=True):
        self.cur = []
        self.blocks.append((name, self.cur))
        if label:
            self.cur.append(name + ':')
    def __call__(self, txt):
        for l in txt.split('\n'):
            l = l.strip()
            if l:
                self.cur.append(l)
    def extend(self, lines):
        for l in lines:
            self(l)
    def text(self):
        out = []
        for n, ls in self.blocks:
            for l in ls:
                out.append(l if l.endswith(':') or l.startswith('.') else '    ' + l)
        return '\n'.join(out) + '\n'
    def get(self, name):
        for n, ls in self.blocks:
            if n == name:
                return ls
        raise KeyError(name)
    def check(self, path=None, verbose=True):
        lines = []
        if path is None:
            for n, ls in self.blocks: lines += ls
        else:
            for n in path: lines += self.get(n)
        return check_lines(lines, verbose)

def interleave(main, fill, start=0, per=None, weights=None):
    out = []
    n = len(main) - start
    k = 0
    for i, m in enumerate(main):
        out.append(m)
        if i < start:
            continue
        j = i - start + 1
        upto = (len(fill) * j + n - 1) // n if per is None else min(len(fill), per * j)
        while k < upto:
            f = fill[k]; k += 1
            if isinstance(f, (list, tuple)): out.extend(f)
            else: out.append(f)
    while k < len(fill):
        f = fill[k]; k += 1
        if isinstance(f, (list, tuple)): out.extend(f)
        else: out.append(f)
    return out

_REG = re.compile(r'^-?\|?(abs\()?([vas])(\d+)\)?\|?$')
_RNG = re.compile(r'^-?\|?(abs\()?([vas])\[(\d+):(\d+)\]\)?\|?$')
def regs(op):
    op = op.strip()
    m = _REG.match(op)
    if m: return [(m.group(2), int(m.group(3)))]
    m = _RNG.match(op)
    if m: return [(m.group(2), i) for i in range(int(m.group(3)), int(m.group(4)) + 1)]
    if op == 'vcc': return [('s', 'vcc')]
    if op == 'm0': return [('s', 'm0')]
    if op == 'exec': return [('s', 'exec')]
    return []

TRANS = ('v_exp_f32', 'v_log_f32', 'v_rcp_f32', 'v_rsq_f32', 'v_sqrt_f32', 'v_sin_f32', 'v_cos_f32', 'v_rcp_iflag_f32')
RMW = ('v_fmac_', 'v_dot2c_', 'v_pk_fmac', 'v_writelane', 'v_mac_')

class I:
    pass

def parse(line):
    line = line.split(';')[0].strip()
    if not line or line.endswith(':') or line.startswith('.'):
        return None
    parts = line.split(None, 1)
    mn = parts[0]
    ops = []
    mods = ''
    if len(parts) > 1:
        raw = [x.strip() for x in re.split(r',(?![^\[]*\])', parts[1])]
        last = raw[-1].split()
        if last:
            raw[-1] = last[0]; mods = ' '.join(last[1:])
        ops = raw
    i = I(); i.mn = mn; i.ops = ops; i.mods = mods; i.line = line
    i.dst = []; i.src = []; i.cls = None; i.ws = 1
    R = lambda xs: [r for x in xs for r in regs(x)]
    if mn == 's_nop':
        i.cls = 'nop'; i.ws = int(ops[0], 0) + 1
    elif mn in ('s_waitcnt', 's_barrier', 's_sleep', 's_setprio', 's_endpgm') or mn.startswith('s_cbranch') or mn == 's_branch':
        i.cls = 'ctl'
    elif mn.startswith('s_load') or mn.startswith('s_buffer_load') or mn in ('s_memtime', 's_memrealtime'):
        i.cls = 'smem'; i.dst = R(ops[:1]); i.src = R(ops[1:])
    elif mn.startswith('s_atomic'):
        i.cls = 'smem'; i.src = R(ops); i.dst = R(ops[:1]) if 'glc' in mods else []
    elif mn.startswith('s_cmp') or mn.startswith('s_bitcmp'):
        i.cls = 'salu'; i.src = R(ops)
    elif mn.startswith('s_'):
        i.cls = 'salu'; i.dst = R(ops[:1]); i.src = R(ops[1:])
        if 'saveexec' in mn: i.dst += [('s', 'exec')]
    elif mn.startswith('v_mfma'):
        i.cls = 'mfma'; i.dst = R(ops[:1]); i.A = R(ops[1:2]); i.B = R(ops[2:3]); i.C = R(ops[3:4]); i.src = i.A + i.B + i.C
        i.passes = 8 if '32x32x16' in mn else 4 if '16x16x32' in mn else None
        assert i.passes, line
    elif mn.startswith('v_'):
        i.cls = 'valu'
        nd = 1
        if mn.startswith('v_add_co') or mn.startswith('v_addc_co') or mn.startswith('v_sub_co') or mn.startswith('v_mad_u64'):
            nd = 2
        i.dst = R(ops[:nd]); i.src = R(ops[nd:])
        if any(mn.startswith(p) for p in RMW): i.src += i.dst
        if 'permlane' in mn: i.dst = R(ops[:2]); i.src = R(ops[:2])
        if mn.startswith('v_cndmask') and len(ops) == 3: i.src += [('s', 'vcc')]
        if mn.startswith('v_cmpx'): i.dst += [('s', 'exec')]
        i.trans = any(mn.startswith(t) for t in TRANS)
        i.dpp = ('row_' in mods or 'quad_perm' in mods or 'wave_' in mods or mn.endswith('_dpp'))
        if i.dpp and ('bound_ctrl' not in mods): i.src += i.dst
        if 'sdwa' in mn and 'UNUSED_PRESERVE' in mods: i.src += i.dst
    elif mn.startswith('ds_'):
        i.cls = 'ds'
        if mn.startswith('ds_read') or mn.startswith('ds_bpermute') or mn.startswith('ds_swizzle') or '_rtn' in mn:
            i.dst = R(ops[:1]); i.src = R(ops[1:])
            if 'd16' in mn: i.src += i.dst
        else:
            i.src = R(ops)
    elif mn.startswith('buffer_') or mn.startswith('global_'):
        i.cls = 'vmem'; i.store_data = []
        lds = (' lds' in ' ' + mods) or 'load_lds' in mn
        if mn in ('buffer_wbl2', 'buffer_inv'):
            pass
        elif lds:
            i.src = R(ops) + [('s', 'm0')]; i.ldsdma = True
        elif 'load' in mn:
            i.dst = R(ops[:1]); i.src = R(ops[1:])
            if 'd16' in mn: i.src += i.dst
        elif 'atomic' in mn:
            i.src = R(ops)
            if 'sc0' in mods: i.dst = R(ops[:1])
        else:
            i.src = R(ops)
            data = ops[0] if mn.startswith('buffer_') else ops[1]
            if 'x3' in mn or 'x4' in mn: i.store_data = regs(data)
    else:
        raise ValueError('unknown instr: ' + line)
    return i

DUMMY = {('v', 250), ('v', 40), ('v', 39)}
def check_lines(lines, verbose=True):
    errs = []
    hist = []
    pos = 0
    vm = []; lg = []
    smem_pending = False
    for ln in lines:
        i = parse(ln)
        if i is None: continue
        def err(msg): errs.append(f'{msg}: "{i.line}"')
        touched = set(i.src) | set(i.dst)
        if i.mn == 's_waitcnt':
            txt = i.line
            m = re.search(r'vmcnt\((\d+)\)', txt)
            if m:
                n = int(m.group(1))
                while len(vm) > n: vm.pop(0)
            m = re.search(r'lgkmcnt\((\d+)\)', txt)
            if m:
                n = int(m.group(1))
                if any(x.cls == 'smem' for x in lg) and n > 0:
                    pass
                else:
                    while len(lg) > n: lg.pop(0)
        else:
            for q, nm in ((vm, 'vmcnt'), (lg, 'lgkmcnt')):
                for p in q:
                    bad = set(p.dst) & touched
                    if bad and not (i.cls == p.cls and ('d16' in i.mn or (bad <= DUMMY and not bad & set(i.src)))):
                        err(f'missing {nm} wait on {sorted(bad)[:3]} (from {p.line})')
        for (p, ppos) in reversed(hist):
            d = pos - ppos - 1 + 0
            if d > 20: break
            pd = set(p.dst)
            need = 0
            if p.cls == 'mfma':
                x = 12 if p.passes == 8 else 8
                if i.cls == 'mfma':
                    if pd & (set(i.A) | set(i.B)): need = x
                    elif pd & set(i.C):
                        if not (p.dst == i.C and p.passes == i.passes): need = x - 2
                    elif pd & set(i.dst): need = x - 2
                elif i.cls in ('valu', 'vmem', 'ds'):
                    if pd & touched: need = x
                    if i.cls == 'valu' and set(p.C) & set(i.dst): need = max(need, 7 if p.passes == 8 else 3)
            if p.cls == 'valu':
                vd = {r for r in pd if r[0] in 'va'}
                sd = {r for r in pd if r[0] == 's'}
                if i.cls == 'mfma' and vd & set(i.src): need = max(need, 2)
                if i.cls == 'valu':
                    if p.trans and not i.trans and vd & set(i.src): need = max(need, 1)
                    if i.dpp and vd & set(i.src): need = max(need, 2)
                    if 'permlane' in i.mn and vd & set(i.src): need = max(need, 2)
                    if ('readlane' in i.mn or 'readfirstlane' in i.mn) and vd & set(i.src): need = max(need, 1)
                    if sd & set(i.src): need = max(need, 4 if 'lane' in i.mn else 2)
                    if ('s', 'exec') in sd and i.dpp: need = max(need, 5)
                    if ('op_sel' in p.mods and not p.mn.startswith('v_pk') or 'sdwa' in p.mn) and vd & touched: need = max(need, 1)
                if i.cls == 'vmem' and sd & set(i.src): need = max(need, 5)
                if i.cls == 'mfma' and ('s', 'exec') in sd: need = max(need, 4)
            if p.cls == 'salu' and ('s', 'm0') in pd and i.cls == 'vmem' and getattr(i, 'ldsdma', False): need = max(need, 1)
            if p.cls == 'vmem' and p.store_data and set(p.store_data) & set(i.dst): need = max(need, 2 if i.cls == 'valu' else 1)
            if d < need:
                err(f'needs {need} wait states after "{p.line}", has {d}')
        if i.cls == 'vmem' and i.mn not in ():
            vm.append(i)
            if len(vm) > 63: err('vmcnt overflow')
        if i.cls in ('ds', 'smem'):
            lg.append(i)
        hist.append((i, pos + i.ws - 1))
        if len(hist) > 40: hist.pop(0)
        pos += i.ws
    if verbose:
        for e in list(dict.fromkeys(errs))[:4]: print('HAZARD', e)
        if errs: print(len(errs), 'hazard(s)')
    return errs

def khead(name):
    return f'.text\n.globl {name}\n.p2align 8\n.type {name},@function\n{name}:\n'

def kdesc(name, vgpr, sgpr=102, accum=None):
    if accum is None:
        accum = min(256, (vgpr + 3) // 4 * 4)
    return f'''.section .rodata,"a"
.p2align 6
.amdhsa_kernel {name}
  .amdhsa_next_free_vgpr {vgpr}
  .amdhsa_next_free_sgpr {sgpr}
  .amdhsa_accum_offset {accum}
  .amdhsa_group_segment_fixed_size 0
  .amdhsa_kernarg_size 80
  .amdhsa_user_sgpr_count 2
  .amdhsa_user_sgpr_kernarg_segment_ptr 1
  .amdhsa_system_sgpr_workgroup_id_x 1
.end_amdhsa_kernel
.text
'''

class VM:
    def __init__(self): self.q = []
    def issue(self, tag): self.q.append(tag)
    def count(self, *tags):
        last = -1
        for i, t in enumerate(self.q):
            if t in tags: last = i
        n = len(self.q) - 1 - last
        self.q = self.q[last + 1:]
        assert n <= 63
        return n
```

```python
from asmlib import *
from layout import *

def AGAIN(name):
    return f's_sub_u32 s97, s97, 1\ns_cmp_gt_i32 s97, 0\ns_cbranch_scc1 {name}'

def entry(A):
    A('''s_load_dwordx16 s[40:55], s[0:1], 0
         s_load_dwordx4 s[56:59], s[0:1], 64
         v_lshrrev_b32 v1, 6, v0
         v_and_b32 v0, 63, v0
         v_readfirstlane_b32 s16, v1
         s_mov_b32 s97, 0x8000''')

NSTAMP = 16
def stamp(A, i, on):
    if on == True: A(f's_memtime s[{64+2*i}:{65+2*i}]')
def stamp_rt(A, i, on):
    if on: A(f's_memrealtime s[{64+2*i}:{65+2*i}]')
def stamp_flush(A, on, kidx=0):
    if not on: return
    A(f'''s_waitcnt lgkmcnt(0)
          s_lshl_b32 s60, s2, 3
          s_add_u32 s60, s60, s16
          s_lshl_b32 s60, s60, 6
          s_add_u32 s60, s60, {WS_DBG + kidx * 131072 * 2}
          s_add_u32 s62, s58, s60
          s_addc_u32 s63, s59, 0
          v_mov_b32 v1, 0''')
    for i in range(NSTAMP):
        A(f'v_mov_b32 v2, s{64+2*i}\nglobal_store_dword v1, v2, s[62:63] offset:{4*i}')

def sw_arrive(A, vaddr_own, gen, vtmp):
    A(f'v_mov_b32 {v(vtmp)}, {gen}\nds_write_b32 {v(vaddr_own)}, {v(vtmp)}')
def sw_addr(A, vdst, base, n=4):
    A(f'v_and_b32 {v(vdst)}, {n - 1}, v0\nv_lshl_add_u32 {v(vdst)}, {v(vdst)}, 2, {base}' if str(base).startswith('s') else
      f'v_and_b32 {v(vdst)}, {n - 1}, v0\nv_lshlrev_b32 {v(vdst)}, 2, {v(vdst)}\nv_add_u32 {v(vdst)}, {base}, {v(vdst)}')
def sw_wait(A, name, vaddr_all, gen, vt, sleep=1):
    A(f'''{name}:
          ds_read_b32 {v(vt)}, {v(vaddr_all)}
          s_waitcnt lgkmcnt(0)
          v_cmp_gt_u32 vcc, {gen}, {v(vt)}
          s_cbranch_vccz {name}_out
          {f"s_sleep {sleep}" if sleep else ""}
          {AGAIN(name)}
          {name}_out:''')

def stamp_init(A, on):
    if on == True:
        for i in range(1, NSTAMP - 1): A(f's_mov_b32 s{64+2*i}, 0')

def poll_lines(A, name, srd, soff, vaddr, vexp, vtmp, sleep):
    A(f'''{name}:
          buffer_load_dword {v(vtmp)}, {v(vaddr)}, {srd}, {soff} offen sc1
          s_waitcnt vmcnt(0)
          v_cmp_eq_u32 vcc, {v(vtmp)}, {v(vexp)}
          s_cmp_eq_u64 vcc, -1
          s_cbranch_scc1 {name}_ok
          s_sleep {sleep}
          {AGAIN(name)}
          {name}_ok:''')

def signal8(A, srd, soff, stride, v1, v2):
    A(f'''v_mul_u32_u24 {v(v1)}, {stride}, v0
          v_mov_b32 {v(v2)}, 1
          s_mov_b64 exec, 0xff
          buffer_atomic_add {v(v2)}, {v(v1)}, {srd}, {soff} offen sc1
          s_mov_b64 exec, -1''')

def wait_cleared(A, name, va, vb):
    A(f'''v_mov_b32 {v(va)}, 0
          {name}:
          global_load_dword {v(vb)}, {v(va)}, s[56:57] offset:128 sc1
          s_waitcnt vmcnt(0)
          v_readfirstlane_b32 s28, {v(vb)}
          s_cmp_lg_u32 s28, 0
          s_cbranch_scc1 {name}_ok
          s_sleep 4
          {AGAIN(name)}
          {name}_ok:''')

def signal2(A, name, srd, idx, target, v1, v2):
    A(f'''v_mov_b32 {v(v1)}, {FL_C + 128*idx}
          v_mov_b32 {v(v2)}, 1
          s_mov_b64 exec, 1
          buffer_atomic_add {v(v2)}, {v(v1)}, {srd}, 0 offen sc0 sc1
          s_waitcnt vmcnt(0)
          v_readfirstlane_b32 s28, {v(v2)}
          s_mov_b64 exec, 0xff
          s_cmp_lg_u32 s28, {target - 1}
          s_cbranch_scc1 {name}
          v_lshlrev_b32 {v(v1)}, 7, v0
          v_mov_b32 {v(v2)}, 1
          s_mov_b32 s28, {FL_R + 4*idx}
          buffer_store_dword {v(v2)}, {v(v1)}, {srd}, s28 offen sc0 sc1
          {name}:
          s_mov_b64 exec, -1''')

def poll_go(A, name, srd, idx, va, vb, sleep):
    A(f'''s_and_b32 s29, s2, 7
          s_lshl_b32 s29, s29, 7
          s_add_u32 s29, s29, {FL_R + 4*idx}
          v_mov_b32 {v(va)}, 0
          {name}:
          buffer_load_dword {v(vb)}, {v(va)}, {srd}, s29 offen sc1
          s_waitcnt vmcnt(0)
          v_readfirstlane_b32 s28, {v(vb)}
          s_cmp_lg_u32 s28, 0
          s_cbranch_scc1 {name}_ok
          s_sleep {sleep}
          {AGAIN(name)}
          {name}_ok:''')

def lds_set(A, addr, va, vb):
    A(f'v_mov_b32 {v(va)}, {addr}\nv_mov_b32 {v(vb)}, 1\nds_write_b32 {v(va)}, {v(vb)}')
def lds_wait(A, name, addr, va, vb, sleep=1):
    A(f'''v_mov_b32 {v(va)}, {addr}
          {name}:
          ds_read_b32 {v(vb)}, {v(va)}
          s_waitcnt lgkmcnt(0)
          v_readfirstlane_b32 s28, {v(vb)}
          s_cmp_lg_u32 s28, 0
          s_cbranch_scc1 {name}_ok
          s_sleep {sleep}
          {AGAIN(name)}
          {name}_ok:''')

def code_prefetch(A, name, start, nbytes, vt):
    A(f'''s_getpc_b64 s[30:31]
          {name}:
          s_sub_u32 s30, s30, {name}-{start}
          s_subb_u32 s31, s31, 0
          s_lshr_b32 s28, s2, 3
          s_lshl_b32 s28, s28, 12
          v_and_b32 {v(vt)}, 31, v0
          v_lshl_add_u32 {v(vt)}, {v(vt)}, 7, s28
          v_min_u32 {v(vt)}, {nbytes}, {v(vt)}
          global_load_dword {v(vt+1)}, {v(vt)}, s[30:31]''')

def ssignal2(A, name, idx, target):
    A(f'''s_mov_b32 s28, 1
          s_mov_b32 s29, {FL_C + 128*idx}
          s_atomic_add s28, s[58:59], s29 glc
          s_waitcnt lgkmcnt(0)
          s_cmp_lg_u32 s28, {target - 1}
          s_cbranch_scc1 {name}
          s_mov_b32 s28, 1''')
    for r in range(8): A(f's_mov_b32 s29, {FL_R + 128*r + 4*idx}\ns_atomic_add s28, s[58:59], s29')
    A(f'{name}:')
```

```python
from asmlib import *
from layout import *
import math, common
MF32 = 'v_mfma_f32_32x32x16_bf16'
MF16 = 'v_mfma_f32_16x16x32_bf16'
L_X, L_A, L_WF, L_CS, L_FL, L_YT = 0, 40960, 81920, 124160, 127232, 128000
WFP = 656
S_F = 17
SX, SWS, SWR, SWI, SWD, SCS = 4, 12, 8, 20, 24, 32
WTL = 160
CSL = 64
ACC = 64
VWTA = 154
ROW = (128, 136); BF = (144, 148); AFR = (40, 48, 56)

def issue_addr(A):
    A(f'''s_mul_i32 s38, s16, {8*81920}
          s_mul_i32 s29, s17, 1280
          s_add_u32 s38, s38, s29
          s_mul_i32 s39, s16, 10240
          s_mov_b32 s30, 80640''')
    for n in range(5):
        A(f'''v_add_u32 v1, {64*n}, v0
              v_mul_u32_u24 v2, 205, v1
              v_lshrrev_b32 v2, 14, v2
              v_lshlrev_b32 v1, 4, v1
              v_mad_u32_u24 {v(24 + n)}, v2, s30, v1''')

def issue_x(A, vm):
    A(f's_mov_b32 s4, s40\ns_mov_b32 s5, s41\ns_mov_b32 s6, {S*D*2}\ns_mov_b32 s7, 0x20000')
    for p in range(2):
        for n in range(5):
            A(f's_add_u32 m0, s39, {L_X + 5120*p + 1024*n}\ns_nop 0\nbuffer_load_dwordx4 {v(24 + n)}, s[4:7], s38 offen lds')
            vm.issue(('x', p))
        A(f's_add_u32 s38, s38, {4*81920}')

def clear_flags(A):
    A(f'v_lshlrev_b32 v1, 2, v0\nv_add_u32 v1, {L_FL}, v1\nv_mov_b32 v2, 0\nds_write_b32 v1, v2')

def stats_store(A, vm, sc=''):
    A(f'''v_and_b32 v8, 31, v0
          v_lshlrev_b32 v9, 3, v8
          v_add_u32 v9, {L_FL + 256}, v9
          ds_read_b64 v[10:11], v9
          v_and_b32 v9, 3, v8
          v_bfe_u32 v12, v8, 2, 1
          v_lshl_add_u32 v9, v12, 3, v9
          v_bfe_u32 v12, v8, 3, 1
          v_lshl_add_u32 v9, v12, 2, v9
          v_lshrrev_b32 v12, 4, v8
          v_lshl_add_u32 v9, v12, 5, v9
          v_lshlrev_b32 v9, 3, v9
          s_lshr_b32 s28, s17, 1
          s_lshl_b32 s28, s28, 6
          s_and_b32 s29, s17, 1
          s_lshl_b32 s29, s29, 4
          s_add_u32 s28, s28, s29
          s_lshl_b32 s28, s28, 3
          s_add_u32 s28, s28, {WS_ST}
          s_cmp_eq_u32 s16, 5
          s_cselect_b32 s28, s28, 0x40000000
          s_waitcnt lgkmcnt(0)
          buffer_store_dwordx2 v[10:11], v9, {s(SWS,4)}, s28 offen{sc}''')
    vm.issue('st')

def side_ids(A):
    A(f'''s_sub_u32 s18, s16, 4
          s_bitcmp1_b32 s2, 2
          s_cselect_b32 s32, s50, s48
          s_cselect_b32 s33, s51, s49
          s_cmp_lt_u32 s2, 48
          s_cselect_b32 s34, {D*F*2}, 0
          s_mov_b32 s35, 0x20000
          s_and_b32 s19, s2, 3
          s_mul_i32 s19, s19, 6
          s_lshr_b32 s28, s2, 3
          s_add_u32 s19, s19, s28
          s_and_b32 s61, s2, 7
          s_mul_i32 s61, s61, 6
          s_add_u32 s61, s61, s28
          s_sub_u32 s61, s61, 2''')

def cs_issue(A, vm):
    A(f'''v_lshrrev_b32 v1, 3, v0
          v_mul_u32_u24 v1, 3072, v1
          v_and_b32 v2, 7, v0
          v_lshl_add_u32 v1, v2, 4, v1
          s_mul_i32 s28, s18, {8*3072}
          s_lshl_b32 s29, s19, 7
          s_add_u32 s28, s28, s29''')
    for n in range(40):
        A(f'buffer_load_dwordx4 {v(CSL + 4*n, 4)}, v1, {s(SCS,4)}, s28 offen\ns_add_u32 s28, s28, {16*3072}'); vm.issue(('cs', n // 8))

def wd_issue(A, vm):
    A(f'''s_mov_b32 s24, s52\ns_mov_b32 s25, s53\ns_mov_b32 s27, 0x20000
          s_cmp_ge_u32 s2, 16
          s_cselect_b32 s26, {F*D*2}, 0
          s_cselect_b32 s28, s61, 0
          v_lshlrev_b32 v1, 4, v0
          s_mul_i32 s28, s28, 40960
          s_mul_i32 s29, s18, 10240
          s_add_u32 s28, s28, s29''')
    for n in range(10):
        A(f's_add_u32 m0, s29, {L_WD + 1024*n}\ns_add_u32 s30, s28, {1024*n}\nbuffer_load_dwordx4 v1, {s(SWD,4)}, s30 offen lds'); vm.issue('wd')

def wt_issue(A, vm):
    A(f'''s_cmp_eq_u32 s18, 0
          s_cselect_b32 s8, s42, s44
          s_cselect_b32 s9, s43, s45
          s_mov_b32 s10, {S*321*2}
          s_mov_b32 s11, 0x20000
          s_and_b32 s28, s17, 3
          s_mul_i32 s28, s28, 5136
          s_lshr_b32 s29, s17, 2
          s_mul_i32 s29, s29, {4*20544}
          s_add_u32 s28, s28, s29
          s_and_b32 s29, s18, 1
          s_mul_i32 s29, s29, {32*WFP}
          s_add_u32 s29, s29, {L_WF}
          v_lshlrev_b32 v1, 4, v0
          s_bfm_b64 exec, 41, 0''')
    for jj in range(4):
        for j in range(8):
            A(f's_add_u32 m0, s29, {WFP*(8*jj + j)}\ns_add_u32 s30, s28, {20544*jj + 640*j}\nbuffer_load_dwordx4 v1, {s(SWR,4)}, s30 offen lds'); vm.issue('wf')
    A('s_mov_b64 exec, -1')

def layernorm(A, vm, landed=None):
    A(f'''v_lshrrev_b32 v1, 4, v0
          v_mul_u32_u24 v1, 1280, v1
          v_and_b32 v2, 15, v0
          v_mul_u32_u24 v3, 80, v2
          v_add3_u32 v1, v1, v3, s39
          v_lshrrev_b32 v3, 3, v2
          v_mul_u32_u24 v3, 20480, v3
          v_bfe_u32 v8, v0, 2, 1
          v_lshl_add_u32 v3, v8, 9, v3
          v_lshrrev_b32 v8, 4, v0
          s_lshl_b32 s29, s16, 3
          v_add_u32 v8, s29, v8               ; s1
          v_lshl_add_u32 v3, v8, 4, v3
          v_and_b32 v9, 3, v0
          v_lshl_add_u32 v3, v9, 2, v3
          v_add_u32 v3, {L_A}, v3
          v_lshlrev_b32 v9, 3, v8
          v_add_u32 v9, {L_FL + 256}, v9''')
    for p in range(2): ln_pass(A, vm, p, landed if p == 0 else None)

def ln_pass(A, vm, p, landed=None):
    X, T = 64, 88
    A(f'''s_mov_b32 s28, 0x3f803f80
          v_mov_b32 v4, 0\nv_mov_b32 v5, 0\nv_mov_b32 v6, 0\nv_mov_b32 v7, 0
          s_waitcnt vmcnt({vm.count(("x", p))}) lgkmcnt(0)''')
    if landed: landed()
    for c in range(5): A(f'ds_read_b128 {v(X + 4*c, 4)}, v1 offset:{L_X + 5120*p + 16*c}')
    for c in range(5):
        A(f's_waitcnt lgkmcnt({4 - c})')
        for q in range(4):
            r = X + 4 * c + q
            A(f'v_dot2_f32_bf16 {v(4 + (q & 1))}, {v(r)}, s28, {v(4 + (q & 1))}')
            A(f'v_dot2_f32_bf16 {v(6 + (q & 1))}, {v(r)}, {v(r)}, {v(6 + (q & 1))}')
    for c in range(20):
        A(f'v_lshlrev_b32 {v(T + 2*c)}, 16, {v(X + c)}\nv_and_b32 {v(T + 2*c + 1)}, 0xffff0000, {v(X + c)}')
    A('v_add_f32 v4, v4, v5\nv_add_f32 v6, v6, v7\ns_nop 0')
    for n in (8, 4, 2, 1):
        A(f'v_add_f32_dpp v4, v4, v4 row_ror:{n} row_mask:0xf bank_mask:0xf\nv_add_f32_dpp v6, v6, v6 row_ror:{n} row_mask:0xf bank_mask:0xf\ns_nop 0')
    A(f'''s_mov_b32 s28, {fhex(1.0/640)}
          v_mul_f32 v4, s28, v4               ; mean
          v_mul_f32 v6, s28, v6
          v_fma_f32 v6, -v4, v4, v6
          v_max_f32 v6, 0, v6                 ; variance
          v_cvt_pk_bf16_f32 v5, v4, v6
          v_and_b32 v6, 0xffff0000, v5
          v_add_f32 v6, {fhex(1e-5)}, v6
          v_cvt_pk_bf16_f32 v6, v6, v6
          v_lshlrev_b32 v6, 16, v6
          v_sqrt_f32 v6, v6
          v_lshlrev_b32 v4, 16, v5
          v_cvt_pk_bf16_f32 v6, v6, v6
          v_lshlrev_b32 v6, 16, v6
          v_rcp_f32 v11, v6
          v_cvt_pk_bf16_f32 v10, -v4, -v4
          v_mul_f32 v6, v4, v11
          v_mov_b32 v4, v11''')
    A(f'ds_write_b64 v9, v[10:11] offset:{32*p}')
    for c in range(20):
        A(f'v_pk_fma_f32 {v(T + 2*c, 2)}, {v(T + 2*c, 2)}, v[4:5], v[6:7] op_sel_hi:[1,0,0] neg_lo:[0,0,1] neg_hi:[0,0,1]')
    for j in range(20):
        A(f'v_cvt_pk_bf16_f32 {v(X + j)}, {v(T + j)}, {v(T + 20 + j)}')
        A(f'ds_write_b32 v3, {v(X + j)} offset:{1024*j + 64*p}')

def dft(A, sc=''):
    K, PH, AMP, K1, K20, T0, T1, H, VA = 4, 5, 6, 7, 8, 9, 10, 11, 12
    AL, BE, GA, SG = 13, 14, 15, 16
    A1, A2 = 18, 20
    VCH, VYR, VYW = 17, 3, 22
    A.block('f1_dft')
    A(f'''v_lshlrev_b32 {v(VA)}, 4, v0
          v_add_u32 {v(VA)}, {L_A}, {v(VA)}
          s_mov_b32 s37, {fhex(1.0/640)}
          v_lshrrev_b32 v1, 3, v0
          v_xor_b32 v1, v1, v0
          v_and_b32 v1, 3, v1
          v_lshlrev_b32 {v(VCH)}, 4, v1
          s_lshl_b32 s28, s16, 11
          s_add_u32 s28, s28, {L_YT}
          v_lshl_add_u32 {v(VYR)}, v0, 4, s28
          v_bfe_u32 v1, v0, 1, 2
          v_lshrrev_b32 v2, 5, v0
          v_xor_b32 v1, v1, v2
          v_lshlrev_b32 v1, 4, v1
          v_and_b32 v2, 31, v0
          v_lshl_add_u32 v1, v2, 6, v1
          v_add_u32 {v(VYW)}, s28, v1
          v_xor_b32 {v(VYW+1)}, 32, {v(VYW)}''')
    A.block('f1_unit')
    def aread(buf, j):
        return [f'ds_read_b128 {v(AFR[buf] + 4*q, 4)}, {v(VA)} offset:{20480*q + 1024*j}' for q in range(2)]
    A.extend(aread(0, 0)); A.extend(aread(1, 1))
    A(f'''s_lshr_b32 s28, s36, 1
          s_lshl_b32 s28, s28, 5              ; 32 kt
          s_and_b32 s29, s36, 1               ; cs
          s_mul_i32 s30, s29, 0x3e800000
          v_and_b32 {v(T0)}, 31, v0
          v_add_u32 {v(T0)}, s28, {v(T0)}
          v_cvt_f32_u32 {v(K)}, {v(T0)}
          v_and_b32 {v(T1)}, 1, v0
          v_lshlrev_b32 {v(T1)}, 31, {v(T1)}
          v_xor_b32 {v(SG)}, 1.0, {v(T1)}
          s_lshl_b32 s31, s29, 31
          s_xor_b32 s31, s31, 1.0             ; sigma
          v_cmp_gt_u32 vcc, s29, {v(T0)}
          v_mov_b32 {v(PH)}, s30
          v_mov_b32 {v(AMP)}, 1.0
          v_mov_b32 {v(AL)}, 1.0
          v_mov_b32 {v(BE)}, s31
          v_xor_b32 {v(GA)}, 0x80000000, {v(BE)}
          v_mov_b32 {v(T1)}, {fhex(160.0)}
          v_cndmask_b32 {v(K)}, {v(K)}, {v(T1)}, vcc
          v_mov_b32 {v(T1)}, {fhex(0.125)}
          v_cndmask_b32 {v(PH)}, {v(PH)}, {v(T1)}, vcc
          v_mov_b32 {v(T1)}, {fhex(math.sqrt(2.0))}
          v_cndmask_b32 {v(AMP)}, {v(AMP)}, {v(T1)}, vcc
          v_cndmask_b32 {v(GA)}, {v(GA)}, {v(AL)}, vcc
          v_cndmask_b32 {v(AL)}, {v(AL)}, 0, vcc
          v_cndmask_b32 {v(BE)}, {v(BE)}, 0, vcc
          v_lshrrev_b32 {v(H)}, 5, v0
          v_mul_u32_u24 {v(H)}, 160, {v(H)}
          v_cvt_f32_u32 {v(H)}, {v(H)}''')
    r0, r1 = ROW
    A(f'''v_mul_f32 {v(r0)}, {v(H)}, {v(K)}
          v_mul_f32 {v(K20)}, {fhex(1.0/32)}, {v(K)}
          v_mul_f32 {v(T1)}, s37, {v(r0)}
          v_mul_f32 {v(K1)}, s37, {v(K)}
          v_floor_f32 {v(T1)}, {v(T1)}
          v_fract_f32 {v(K20)}, {v(K20)}
          v_fmac_f32 {v(r0)}, {fhex(-640.0)}, {v(T1)}
          v_fma_f32 {v(r0)}, {v(r0)}, s37, {v(PH)}
          v_add_f32 {v(r1)}, {v(r0)}, {v(K1)}
          v_add_f32 {v(r0+1)}, {v(r0)}, {v(K20)}
          v_add_f32 {v(r1+1)}, {v(r1)}, {v(K20)}''')
    for r in (K20, r0, r0 + 1, r1, r1 + 1, K1): A(f'v_cos_f32 {v(r)}, {v(r)}')
    A(f'v_add_f32 {v(K20)}, {v(K20)}, {v(K20)}')
    for r in (r0, r0 + 1, r1, r1 + 1): A(f'v_mul_f32 {v(r)}, {v(AMP)}, {v(r)}')
    A(f'v_add_f32 {v(K1)}, {v(K1)}, {v(K1)}')
    for e in range(2, 8):
        for j in range(2):
            A(f'v_fma_f32 {v(ROW[j]+e)}, {v(K20)}, {v(ROW[j]+e-1)}, -{v(ROW[j]+e-2)}')
    def cvt(j): return [f'v_cvt_pk_bf16_f32 {v(BF[j&1] + q)}, {v(ROW[j&1] + 2*q)}, {v(ROW[j&1] + 2*q + 1)}' for q in range(4)]
    def adv(j): return [f'v_fma_f32 {v(ROW[j&1]+e)}, {v(K1)}, {v(ROW[(j-1)&1]+e)}, -{v(ROW[j&1]+e)}' for e in range(8)]
    A.extend(cvt(0))
    A(f'''v_lshrrev_b32 {v(T0)}, 2, v0
          v_add_u32 {v(T0)}, s28, {v(T0)}
          v_cmp_eq_u32 vcc, 0, {v(T0)}
          v_mul_u32_u24 {v(T0)}, {YS}, {v(T0)}
          s_lshl_b32 s30, s29, 6
          v_add_u32 {v(A1)}, s30, {v(T0)}
          v_add_u32 {v(A1+1)}, {16*YS}, {v(A1)}
          s_add_u32 s30, s30, {320*YS}
          v_sub_u32 {v(A2)}, s30, {v(T0)}
          v_subrev_u32 {v(A2+1)}, {16*YS}, {v(A2)}
          s_mul_i32 s30, s29, {160*YS}
          v_mov_b32 {v(T0)}, s30
          v_cndmask_b32 {v(A1)}, {v(A1)}, {v(T0)}, vcc
          v_add_u32 {v(T0)}, 64, {v(T0)}
          v_cndmask_b32 {v(A2)}, {v(A2)}, {v(T0)}, vcc
          v_add_u32 {v(A1)}, {v(A1)}, {v(VCH)}
          v_add_u32 {v(A1+1)}, {v(A1+1)}, {v(VCH)}
          v_add_u32 {v(A2)}, {v(A2)}, {v(VCH)}
          v_add_u32 {v(A2+1)}, {v(A2+1)}, {v(VCH)}
          s_lshl_b32 s30, s17, 7
          s_add_u32 s30, s30, {WS_Y}''')
    for j in range(20):
        b = j & 1
        nxt = aread((j + 2) % 3, j + 2) if j < 18 else []
        fill = (adv(j + 1) if 1 <= j < 19 else []) + (cvt(j + 1) if j < 19 else [])
        A(f's_waitcnt lgkmcnt({2 if j < 19 else 0})')
        for q in range(2):
            d = ACC + 32 * q + 16 * b
            A(f'{MF32} {v(d, 16)}, {v(AFR[j % 3] + 4*q, 4)}, {v(BF[b], 4)}, {"0" if j < 2 else v(d, 16)}')
            if nxt: A(nxt[q])
            A.extend(fill[q * len(fill) // 2:(q + 1) * len(fill) // 2])
        if j < 19: A('s_nop 0')
    E0, O0, E1, O1 = ACC, ACC + 16, ACC + 32, ACC + 48
    A('s_nop 4')
    for r in range(16): A(f'v_fmac_f32 {v(E0+r)}, {v(SG)}, {v(E1+r)}')
    for r in range(16): A(f'v_fmac_f32 {v(O0+r)}, {v(SG)}, {v(O1+r)}')
    for r in range(16): A(f'v_mul_f32 {v(E1+r)}, {v(BE)}, {v(E0+r)}')
    for r in range(16): A(f'v_fmac_f32 {v(E0+r)}, {v(AL)}, {v(O0+r)}')
    for r in range(16): A(f'v_fmac_f32 {v(E1+r)}, {v(GA)}, {v(O0+r)}')
    for n, (src, adr) in enumerate(((E0, A1), (E1, A2))):
        o = 24 + 8 * n; g = 56 + 0 * n
        for q in range(8): A(f'v_cvt_pk_bf16_f32 {v(o + q)}, {v(src + 2*q)}, {v(src + 2*q + 1)}')
        if n == 1:
            A('s_waitcnt lgkmcnt(0)')
            A(f'buffer_store_dwordx4 {v(152, 4)}, {v(A1)}, {s(SWS,4)}, s30 offen{sc}')
            A(f'buffer_store_dwordx4 {v(156, 4)}, {v(A1 + 1)}, {s(SWS,4)}, s30 offen{sc}')
        A(f'ds_write_b128 {v(VYW)}, {v(o, 4)}\nds_write_b128 {v(VYW+1)}, {v(o + 4, 4)}')
        A(f'ds_read_b128 {v(152 + 8*n, 4)}, {v(VYR)}\nds_read_b128 {v(156 + 8*n, 4)}, {v(VYR)} offset:1024')
    A('s_waitcnt lgkmcnt(0)')
    A(f'buffer_store_dwordx4 {v(160, 4)}, {v(A2)}, {s(SWS,4)}, s30 offen{sc}')
    A(f'buffer_store_dwordx4 {v(164, 4)}, {v(A2 + 1)}, {s(SWS,4)}, s30 offen{sc}')
    A('s_add_u32 s36, s36, 4\ns_cmp_lt_u32 s36, 8\ns_cbranch_scc1 f1_unit')
    A.block('f1_unit_end')

SL, SH, SE, SL0 = 224, 228, 232, 236
def selectors(A):
    A(f'''v_and_b32 v1, 1, v0
          v_lshlrev_b32 v1, 4, v1
          v_lshlrev_b32 v1, v1, 0x3f80        ; value in the low or high half
          v_bfe_u32 v2, v0, 1, 2              ; register index
          v_bfe_u32 v3, v0, 3, 1              ; n >> 3
          v_lshrrev_b32 v4, 4, v0             ; g''' .replace('v_lshlrev_b32 v1, v1, 0x3f80', 'v_mov_b32 v5, 0x3f80\nv_lshlrev_b32 v1, v1, v5'))
    for q in range(4):
        A(f'v_cmp_eq_u32 vcc, {q}, v2\ns_nop 1\nv_cndmask_b32 {v(SE + q)}, 0, v1, vcc')
    A('v_cmp_eq_u32 vcc, 0, v3\ns_nop 1')
    for q in range(4): A(f'v_cndmask_b32 {v(SE + q)}, 0, {v(SE + q)}, vcc')

def colsum_part(A, vm, gen, mid1, mid2):
    for n in range(40):
        if n == 16: mid1()
        if n % 8 == 0: A(f's_waitcnt vmcnt({vm.count(("cs", n // 8))})')
        A(f'{MF16} v[40:43], {v(CSL + 4*n, 4)}, {v(SE, 4)}, {"0" if n == 0 else "v[40:43]"}')
    A(f'''v_lshlrev_b32 v7, 4, v0
          s_lshl_b32 s28, s18, 10
          s_add_u32 s28, s28, {L_CS}
          v_add_u32 v7, s28, v7
          s_lshl_b32 s28, s18, 2
          s_add_u32 s28, s28, {L_FL}
          v_mov_b32 v8, s28
          s_nop 1
          ds_write_b128 v7, v[40:43]
''')
    mid2()
    A(f's_lshl_b32 s28, s18, 2\ns_add_u32 s28, s28, {L_FL}\nv_mov_b32 v8, s28\ns_waitcnt vmcnt({vm.count("wf")}) lgkmcnt(0)')
    common.sw_arrive(A, 8, gen, 10)
    common.sw_addr(A, 9, L_FL, 2)
    common.sw_wait(A, 'f1_sw', 9, gen, 12)

def side_sync(A, n, gen):
    A(f's_waitcnt vmcnt({n})')
    A(f's_lshl_b32 s28, s18, 2\ns_add_u32 s28, s28, {L_FL}\nv_mov_b32 v8, s28')
    common.sw_addr(A, 9, L_FL)
    common.sw_arrive(A, 8, gen, 10)
    common.sw_wait(A, f'f1_sw{gen}', 9, gen, 12)

def wt_job(A, vm, sc=''):
    A(f'''v_lshrrev_b32 v1, 3, v0
          s_lshl_b32 s28, s18, 3
          v_add_u32 v1, s28, v1
          v_and_b32 v6, 7, v0
          v_mul_u32_u24 v2, {WFP + 2}, v6
          v_lshl_add_u32 v2, v1, 1, v2
          v_add_u32 v2, {L_WF}, v2
          v_lshlrev_b32 v6, 4, v6
          v_mul_u32_u24 v3, {YS}, v1
          v_add_u32 v6, v6, v3
          v_cmp_eq_u32 vcc, 0, v1
          v_mov_b32 v3, 0x40000000
          s_lshr_b32 s28, s17, 2
          s_lshl_b32 s28, s28, 9
          s_and_b32 s29, s17, 3
          s_lshl_b32 s29, s29, 7
          s_add_u32 s28, s28, s29
          s_add_u32 s30, s28, {WS_WT}
          v_cndmask_b32 v7, v3, v6, vcc''')
    def rd(r):
        b = 16 + 8 * (r & 1)
        return [f'ds_read_u16 {v(b + 4*p + jj)}, v2 offset:{32*WFP*p + 8*WFP*jj + 32*r}' for p in range(2) for jj in range(4)]
    A.extend(rd(0))
    for r in range(21):
        b = 16 + 8 * (r & 1); o = 32 + 4 * (r & 3)
        if r < 20:
            nx = rd(r + 1); A.extend(nx[:7]); A('s_waitcnt lgkmcnt(7)')
        else:
            nx = []; A('s_waitcnt lgkmcnt(0)')
        for jj in range(4): A(f'v_lshl_or_b32 {v(o + jj)}, {v(b + 4 + jj)}, 16, {v(b + jj)}')
        A.extend(nx[7:])
        A(f'buffer_store_dwordx4 {v(o, 4)}, {"v6" if r < 20 else "v7"}, {s(SWS,4)}, s30 offen{sc}'); vm.issue('wts')
        A(f's_add_u32 s30, s30, {16*YS}')

def wd_job(A, vm, sc=''):
    A(f'''v_lshrrev_b32 v1, 5, v0
          v_lshlrev_b32 v1, 4, v1
          v_bfe_u32 v2, v0, 4, 1
          v_lshl_add_u32 v1, v2, 2, v1
          v_bfe_u32 v2, v0, 2, 2
          v_add_u32 v1, v1, v2
          v_mul_u32_u24 v1, 1280, v1
          s_mul_i32 s28, s18, 320
          s_add_u32 s28, s28, {L_WD}
          v_add_u32 v1, s28, v1
          v_and_b32 v2, 3, v0
          v_lshl_add_u32 v3, v2, 3, v1
          v_lshl_add_u32 v2, v2, 4, v1
          s_mul_i32 s28, s18, 480
          s_mul_i32 s29, s61, 5
          s_add_u32 s28, s28, s29
          s_lshl_b32 s28, s28, 10
          s_add_u32 s28, s28, {WS_WD}
          s_cmp_ge_u32 s2, 16
          s_cselect_b32 s28, s28, 0x40000000
          v_lshlrev_b32 v1, 4, v0''')
    for c in range(2):
        for t in range(5):
            for q in range(2):
                off = 160 * c + 10240 * q + (64 * (t >> 1) + 8 * (t & 1) if t < 4 else 128)
                A(f'ds_read_b64_tr_b16 {v(160 + 20*c + 4*t + 2*q, 2)}, {"v2" if t < 4 else "v3"} offset:{off}')
        A(f's_add_u32 s29, s28, 4096')
        for t in range(5):
            A(f's_waitcnt lgkmcnt({8 - 2*t})')
            A(f'buffer_store_dwordx4 {v(160 + 20*c + 4*t, 4)}, v1, {s(SWS,4)}, {"s28" if t < 4 else "s29"} offen offset:{1024 * (t & 3)}{sc}'); vm.issue('wds')
        A(f's_add_u32 s28, s28, {240*1024}')

def colsum_final(A, sc='', after=''):
    A(f'''s_cmp_lg_u32 s16, 5
          s_cbranch_scc1 f1_nocs
          s_cmp_ge_u32 s2, 48
          s_cbranch_scc1 f1_cssig
          v_lshrrev_b32 v1, 5, v0
          v_lshlrev_b32 v1, 8, v1
          v_and_b32 v2, 7, v0
          v_lshl_add_u32 v1, v2, 4, v1
          v_bfe_u32 v2, v0, 3, 2
          v_lshl_add_u32 v1, v2, 2, v1
          v_add_u32 v1, {L_CS}, v1''')
    for half in range(2):
        for n in range(2): A(f'ds_read_b32 {v(64 + 2*half + n)}, v1 offset:{1024*n + 512*half}')
    A('s_waitcnt lgkmcnt(0)')
    for n in (2, 1):
        for q in range(n): A(f'v_add_f32 {v(64 + q)}, {v(64 + q)}, {v(64 + n + q)}')
    A(f'''v_cvt_pk_bf16_f32 v2, v64, v64
          v_lshlrev_b32 v2, 16, v2
          v_sub_f32 v3, v64, v2
          v_cvt_pk_bf16_f32 v2, v2, v3
          v_lshrrev_b32 v3, 4, v0
          v_lshlrev_b32 v3, 7, v3
          v_and_b32 v4, 15, v0
          v_lshl_add_u32 v3, v4, 2, v3
          s_lshl_b32 s28, s19, 9
          s_bitcmp1_b32 s2, 2
          s_cselect_b32 s29, 64, 0
          s_add_u32 s28, s28, s29
          s_add_u32 s28, s28, {WS_CS}
          buffer_store_dword v2, v3, {s(SWS,4)}, s28 offen{sc}
          f1_cssig:
          {after}
          f1_nocs:''')

def wd_touch(A):
    A(f'''s_mov_b32 s24, s52\ns_mov_b32 s25, s53\ns_mov_b32 s26, {F*D*2}\ns_mov_b32 s27, 0x20000
          s_lshl_b32 s61, s2, 1
          s_and_b32 s28, s18, 1
          s_add_u32 s61, s61, s28
          s_lshl_b32 s61, s61, 13
          v_lshlrev_b32 v251, 7, v0
          buffer_load_dword v250, v251, {s(SWD,4)}, s61 offen
          s_add_u32 s61, s61, {128*8192}
          buffer_load_dword v250, v251, {s(SWD,4)}, s61 offen''')

def wd_prefetch(A):
    A(f'''s_mov_b32 s24, s52\ns_mov_b32 s25, s53\ns_mov_b32 s26, {F*D*2}\ns_mov_b32 s27, 0x20000
          s_lshr_b32 s61, s2, 3
          s_lshl_b32 s61, s61, 2
          s_add_u32 s61, s61, s18
          s_lshl_b32 s61, s61, 13
          v_lshlrev_b32 v251, 7, v0''')
    for i in range(8):
        A(f'buffer_load_dword v250, v251, {s(SWD,4)}, s61 offen\ns_add_u32 s61, s61, {32*8192}')
```

```python
import numpy as np
S, D, F = 2048, 640, 1536
WS_H   = 0
WS_XN  = 8 << 20
WS_Y   = 12 << 20
WS_WT  = 16 << 20
WS_WD  = 20 << 20
WS_U   = 24 << 20
WS_ST  = 28 << 20
WS_DBG = 32 << 20
WS_SIZE = 268435456
YS = 8192 + 128
US = 4096 + 128

def P_to_s(P):
    P = np.asarray(P)
    b = P >> 6; c = (P >> 5) & 1; u = (P >> 4) & 1; m = P & 15
    s1 = 16 * c + 8 * ((m >> 2) & 1) + 4 * (m >> 3) + (m & 3)
    return 64 * s1 + 2 * b + u

def h_slot_f(p, g, e):
    return 32 * p + 16 * (g >> 1) + 8 * (e >> 2) + 4 * (g & 1) + (e & 3)

def unpack_h(raw):
    raw = raw.reshape(128, 48, 4, 16, 8)
    h = np.zeros((S, F), np.uint16)
    RG, p, g, m, e = np.meshgrid(np.arange(128), np.arange(48), np.arange(4), np.arange(16), np.arange(8), indexing='ij')
    h[P_to_s(16 * RG + m), h_slot_f(p, g, e)] = raw
    return h

def bf16_to_f32(u):
    return (u.astype(np.uint32) << 16).view(np.float32)
def f32_to_bf16(x):
    u = np.ascontiguousarray(x, np.float32).view(np.uint32)
    return ((u + 0x7FFF + ((u >> 16) & 1)) >> 16).astype(np.uint16)

def colmap(t, i):
    t = np.asarray(t); i = np.asarray(i)
    return np.where(t < 4, 32 * (t >> 1) + 8 * (i >> 2) + 4 * (t & 1) + (i & 3), 64 + i)

def pack_h(h):
    RG, p, g, m, e = np.meshgrid(np.arange(128), np.arange(48), np.arange(4), np.arange(16), np.arange(8), indexing='ij')
    return np.ascontiguousarray(h[P_to_s(16 * RG + m), h_slot_f(p, g, e)])

def pack_wd(wd):
    cb, p, t, g, i, e = np.meshgrid(np.arange(8), np.arange(48), np.arange(5), np.arange(4), np.arange(16), np.arange(8), indexing='ij')
    return np.ascontiguousarray(wd[h_slot_f(p, g, e), 80 * cb + colmap(t, i)])

def u_slot(k, part):
    k = np.asarray(k)
    return 32 * (10 * part + k % 10) + k // 10

def pack_u(Ur, Ui):
    U = np.zeros((640, 2048), np.uint16)
    sP = P_to_s(np.arange(2048))
    k = np.arange(320)
    U[u_slot(k, 0)] = Ur[sP].T
    U[u_slot(k, 1)] = Ui[sP].T
    return U
def unpack_u(U):
    U = U.reshape(640, 2048)
    sP = P_to_s(np.arange(2048)); k = np.arange(320)
    Ur = np.zeros((2048, 320), np.uint16); Ui = np.zeros((2048, 320), np.uint16)
    Ur[sP] = U[u_slot(k, 0)].T; Ui[sP] = U[u_slot(k, 1)].T
    return Ur, Ui

def drow(r, h):
    return 8 * (r >> 2) + 4 * h + (r & 3)

def pack_y(Yr, Yi):
    k, s2, ks, h, e = np.meshgrid(np.arange(320), np.arange(64), np.arange(2), np.arange(2), np.arange(8), indexing='ij')
    srow = 64 * drow(8 * ks + e, h) + s2
    return np.ascontiguousarray(np.stack([Yr[srow, k], Yi[srow, k]], axis=2))
def unpack_y(raw):
    raw = raw.reshape(320, 64, 2, 2, 2, 8)
    k, s2, ks, h, e = np.meshgrid(np.arange(320), np.arange(64), np.arange(2), np.arange(2), np.arange(8), indexing='ij')
    srow = 64 * drow(8 * ks + e, h) + s2
    Yr = np.zeros((2048, 320), np.uint16); Yi = np.zeros((2048, 320), np.uint16)
    Yr[srow, k] = raw[:, :, 0]; Yi[srow, k] = raw[:, :, 1]
    return Yr, Yi

def pack_wt(wr, wi):
    wr = wr.copy(); wi = wi.copy()
    for c in (0, 320):
        wr[:, c] = f32_to_bf16(bf16_to_f32(wr[:, c]) * 0.5); wi[:, c] = f32_to_bf16(bf16_to_f32(wi[:, c]) * 0.5)
    k, q, h, j1, jj = np.meshgrid(np.arange(321), np.arange(8), np.arange(2), np.arange(32), np.arange(4), indexing='ij')
    j = j1 + 32 * (8 * q + 4 * h + jj)
    return np.ascontiguousarray(wr[j, k].astype(np.uint32) | (wi[j, k].astype(np.uint32) << 16))

def sfft_tables():
    out = []
    h, a, e = np.meshgrid(np.arange(2), np.arange(32), np.arange(8), indexing='ij')
    def frags(n, aa, ks):
        b = 16 * ks + 8 * (e >> 2) + 4 * h + (e & 3)
        ang = 2 * np.pi * ((aa * b) % n) / n
        c = np.cos(ang); sn = np.sin(ang)
        c[np.abs(c) < 1e-12] = 0; sn[np.abs(sn) < 1e-12] = 0
        return [f32_to_bf16(c.astype(np.float32)), f32_to_bf16(sn.astype(np.float32)), f32_to_bf16((-sn).astype(np.float32) + 0.0)]
    for ks in range(2): out += frags(32, a, ks)
    for ta in range(2):
        for ks in range(4): out += frags(64, a + 32 * ta, ks)
    h, a, jj = np.meshgrid(np.arange(2), np.arange(32), np.arange(4), indexing='ij')
    for which in range(2):
        for t in range(2):
            for rg in range(4):
                row = 8 * rg + 4 * h + jj
                n = (32 * t + row) * a if which == 0 else (32 * t + a) * row
                ang = 2 * np.pi * n / 2048
                sc = 1.0 if which == 0 else 1.0 / 2048 / 320
                out += [(np.cos(ang) * sc).astype(np.float32), (np.sin(ang) * sc).astype(np.float32)]
    return b''.join(np.ascontiguousarray(x).tobytes() for x in out)
TAB_F32, TAB_F64, TAB_TW1, TAB_TW2, TAB_SIZE = 0, 6144, 30720, 47104, 63488

def data_asm(label, data):
    q = np.frombuffer(data, np.uint64)
    lines = [f'.p2align 8\n.type {label},@object\n{label}:']
    for i in range(0, len(q), 8):
        lines.append('.quad ' + ','.join(('0x%x' % x) if x else '0' for x in q[i:i+8]))
    lines.append(f'.size {label}, {len(data)}')
    return '\n'.join(lines) + '\n'
WS_CS = WS_ST + 65536

def strided(raw, n, size, stride):
    return np.stack([raw[i * stride:i * stride + size] for i in range(n)])
def put_strided(img, off, arr, n, stride):
    b = np.ascontiguousarray(arr).view(np.uint8).reshape(n, -1)
    for i in range(n): img[off + i * stride:off + i * stride + b.shape[1]] = b[i]
WS_FL = WS_ST + 131072
FL_U = WS_FL
FL_R = WS_FL + 16384
FL_C = FL_R + 1024
FL_A = FL_C + 1024
FL_H = FL_A + 1024
FL_LINES = 128 + 8 + 8 + 8 + 32
```

```python
from asmlib import *
from layout import *
import common, math
LOG2E = 1.4426950408889634
MF32 = 'v_mfma_f32_32x32x16_bf16'
MF16 = 'v_mfma_f32_16x16x32_bf16'
SLOTS = [69376, 89856, 110336, 48896, 0, 20480]
L_F = [130816 + 8192 * i for i in range(4)]
L_FLG = 163584
L_BIG = SLOTS[0]
L_GATE = SLOTS[3]
S_X, S_O, S_WS = 4, 8, 12

def srds(A):
    A(f'''s_mov_b32 s4, s40\ns_mov_b32 s5, s41\ns_mov_b32 s6, {S*D*2}\ns_mov_b32 s7, 0x20000
          s_mov_b32 s8, s54\ns_mov_b32 s9, s55\ns_mov_b32 s10, {S*D*2}\ns_mov_b32 s11, 0x20000
          s_mov_b32 s12, s58\ns_mov_b32 s13, s59\ns_mov_b32 s14, {WS_SIZE}\ns_mov_b32 s15, 0x20000''')

ACCY = 8; AF = (28, 48); HB = 80; NH = 11; NH0 = 3
VH, VR1, VR2, VFO, VFA, VH3, VFT, VWD = 2, 3, 4, 5, 6, 7, 68, 73
S_H, S_WD, S_LW, S_D = 20, 21, 23, 36
NGR = 12
HRATE = 2

def g_setup(A):
    A(f'''v_lshlrev_b32 {v(VH)}, 4, v0
          s_mov_b32 s36, s52\ns_mov_b32 s37, s53\ns_mov_b32 s38, {F*D*2}\ns_mov_b32 s39, 0x20000
          s_mul_i32 {s(S_WD)}, s18, 160
          s_lshl_b32 {s(S_LW)}, s19, 10
          s_lshl_b32 s28, s17, 2
          s_add_u32 s28, s28, s19
          s_mul_i32 {s(S_H)}, s28, 49152
          s_add_u32 {s(S_H)}, {s(S_H)}, {WS_H}
          s_lshl_b32 s28, s19, 2
          s_add_u32 s28, s28, {L_FLG}
          v_mov_b32 {v(VFO)}, s28
          s_lshl_b32 s28, s19, 6
          v_add_u32 {v(VFT)}, s28, v0
          s_movk_i32 s29, 1120''')
    common.sw_addr(A, VFA, L_FLG)
    for i in range(5):
        A(f'''v_add_u32 {v(VFT+1)}, {256*i}, {v(VFT)}
              v_mul_u32_u24 {v(VFT+2)}, 6554, {v(VFT+1)}
              v_lshrrev_b32 {v(VFT+2)}, 16, {v(VFT+2)}
              v_lshlrev_b32 {v(VFT+1)}, 4, {v(VFT+1)}
              v_mad_u32_u24 {v(VWD+i)}, {v(VFT+2)}, s29, {v(VFT+1)}''')
    A(f'''v_lshrrev_b32 {v(VFT)}, 5, v0
          v_lshlrev_b32 {v(VFT)}, 4, {v(VFT)}
          v_bfe_u32 {v(VFT+1)}, v0, 4, 1
          v_lshl_add_u32 {v(VFT)}, {v(VFT+1)}, 2, {v(VFT)}
          v_bfe_u32 {v(VFT+1)}, v0, 2, 2
          v_add_u32 {v(VFT)}, {v(VFT)}, {v(VFT+1)}
          v_mul_u32_u24 {v(VFT)}, 160, {v(VFT)}
          v_and_b32 {v(VFT+1)}, 3, v0
          v_lshl_add_u32 {v(VR1)}, {v(VFT+1)}, 3, {v(VFT)}
          v_add_u32 {v(VR2)}, 0x10000, {v(VR1)}''')

def wd_dma(g, sc=''):
    return [[f's_add_u32 m0, {s(S_LW)}, {SLOTS[g % 6] + 4096*i}', f's_add_u32 s24, {s(S_WD)}, {128*1280*g}',
             f'buffer_load_dwordx4 {v(VWD + i)}, {s(S_D,4)}, s24 offen lds'] for i in range(5)]
def h_load(g, i, sc=''):
    r = HB + 16 * (g % NH) + 4 * i
    L = [f'buffer_load_dwordx4 {v(r, 4)}, {v(VH)}, {s(S_WS,4)}, {s(S_H)} offen offset:{1024*i}{sc}']
    if i == 3: L.append(f's_add_u32 {s(S_H)}, {s(S_H)}, 4096')
    return L
def a_reads(g, kk, buf):
    out = []
    for t in range(5):
        for q in range(2):
            off = SLOTS[g % 6] + 5120 * kk + 1280 * q + 32 * t
            out.append(f'ds_read_b64_tr_b16 {v(AF[buf] + 4*t + 2*q, 2)}, {v(VR1 if off < 65536 else VR2)} offset:{off & 65535}')
    return out
def flag_check(A, name, gen, slow):
    A(f'v_cmp_gt_u32 vcc, {gen}, {v(VFT)}\ns_cbranch_vccnz {name}\n{name}_ok:')
    common.sw_wait(slow, name, VFA, gen, VFT)
    slow(f's_branch {name}_ok')

def g_prefill(A, vm, groups, sc=''):
    for g in groups:
        for d in wd_dma(g, sc): A.extend(d); vm.issue(('d', g))

def g_main(A, vm, name, pre, slow, sc='', stamp=lambda i: None):
    hq = [(g, i) for g in range(NH0, NGR) for i in range(4)]
    for g in range(NH0):
        for i in range(4): A.extend(h_load(g, i, sc)); vm.issue(('h', g))
        if g == 0: g_prefill(A, vm, range(pre, min(2, 6)), sc); pre = max(pre, 2)
    A(f's_waitcnt vmcnt({vm.count(("d", 0), ("d", 1), ("h", 0))})')
    common.sw_arrive(A, VFO, 1, VFT)
    common.sw_wait(A, f'{name}_g0', VFA, 1, VFT)
    stamp(3)
    lg = VM()
    def ds(line, tag): A(line); lg.issue(tag)
    for n, r in enumerate(a_reads(0, 0, 0)): ds(r, (0, n // 2))
    pend = [d for g in range(pre, 6) for d in [(g, x) for x in wd_dma(g, sc)]]
    step = 0
    soff = None
    for g in range(NGR):
        for kk in range(4):
            buf = step & 1
            last = (g == NGR - 1 and kk == 3)
            ng, nk = (g, kk + 1) if kk < 3 else (g + 1, 0)
            rd = [] if last else a_reads(ng, nk, buf ^ 1)
            hs = [x for x in hq[:HRATE] if x[0] < g + NH]; hq = hq[len(hs):]
            if kk == 3 and 1 <= g <= 6: pend += [(g + 5, x) for x in wd_dma(g + 5, sc)]
            nd = 2 if len(pend) > 3 else 1
            dl = pend[:nd]; pend = pend[nd:]
            for t in range(5):
                tags = [(step, min(t + 1, 4))] + (['f'] if t == 0 and kk == 3 else [])
                if t in (0, 2, 4): A(f's_waitcnt lgkmcnt({lg.count(*tags)})')
                if t == 0 and kk == 0 and g > 0: A(f's_waitcnt vmcnt({vm.count(("h", g))})')
                if t == 0 and kk == 3 and 1 <= g <= 10: flag_check(A, f'{name}_f{g}', g + 1, slow)
                d = ACCY + 4 * t
                A(f'{MF16} {v(d, 4)}, {v(AF[buf] + 4*t, 4)}, {v(HB + 16*(g % NH) + 4*kk, 4)}, {"0" if step == 0 else v(d, 4)}')
                for r in rd[2*t:2*t + 2]: ds(r, (step + 1, t))
                if t < len(hs): A.extend(h_load(hs[t][0], hs[t][1], sc)); vm.issue(('h', hs[t][0]))
                if 2 <= t < 2 + len(dl):
                    gg, x = dl[t - 2]
                    A(x[0])
                    A(x[1] if soff != gg else 's_nop 0'); soff = gg
                    A(x[2]); vm.issue(('d', gg))
                if t == 3 and kk == 2 and 1 <= g <= 10: ds(f'ds_read_b32 {v(VFT)}, {v(VFA)}', 'f')
                if t == 4 and kk == 3 and g <= 9:
                    assert not any(x[0] == g + 2 for x in pend)
                    if any(x == ('d', g + 2) for x in vm.q): A(f's_waitcnt vmcnt({vm.count(("d", g + 2))})')
                    A(f'v_mov_b32 {v(VFT+1)}, {g + 2}'); ds(f'ds_write_b32 {v(VFO)}, {v(VFT+1)}', 'w')
            step += 1
    assert not pend
    stamp(4)
    T = AF[0]
    A(f'''s_mov_b32 s28, {fhex(-LOG2E)}
          s_mul_i32 s29, s19, 5120
          s_add_u32 s29, s29, {L_GATE}
          v_add_u32 {v(VH3)}, s29, {v(VH)}
          s_nop 3''')
    for r in range(20): A(f'v_mul_f32 {v(T+r)}, s28, {v(ACCY+r)}')
    for r in range(20): A(f'v_exp_f32 {v(T+r)}, {v(T+r)}')
    for r in range(20): A(f'v_add_f32 {v(T+r)}, 1.0, {v(T+r)}')
    for r in range(20): A(f'v_rcp_f32 {v(T+r)}, {v(T+r)}')
    for t in range(5):
        for r in range(4 * t, 4 * t + 4): A(f'v_mul_f32 {v(T+r)}, {v(T+r)}, {v(ACCY+r)}')
        A(f'ds_write_b128 {v(VH3)}, {v(T + 4*t, 4)} offset:{1024*t}')
    A(f'v_mov_b32 {v(VFT)}, 1\ns_waitcnt lgkmcnt(0)\nds_write_b32 {v(VFO)}, {v(VFT)} offset:32')

C32, F64, TW1, TW2 = 120, 144, 192, 224
WTR, DRE, DIM, OWN, OTH, TMP = 104, 72, 88, 40, 56, 24
VL, VB, VP, VFP, VFW, VST = 2, 3, 4, 5, 6, 7
S_K, S_T, S_LB = 20, 21, 22
def fr(base, part, i): return base + 8 * part + 4 * i

def f_setup(A):
    A(f'''s_and_b32 {s(S_T)}, s19, 1
          s_lshl_b32 {s(S_LB)}, s19, 13
          s_add_u32 {s(S_LB)}, {s(S_LB)}, {L_F[0]}
          v_lshlrev_b32 {v(VL)}, 4, v0
          v_add_u32 {v(VB)}, {s(S_LB)}, {v(VL)}
          s_xor_b32 s28, s19, 1
          s_lshl_b32 s28, s28, 13
          s_add_u32 s28, s28, {L_F[0]}
          v_add_u32 {v(VP)}, s28, {v(VL)}
          s_lshl_b32 s28, s19, 2
          s_add_u32 s28, s28, {L_FLG + 16}
          v_mov_b32 {v(VFW)}, s28
          s_and_b32 s28, s28, -8''')
    common.sw_addr(A, VFP, 's28', 2)

def sf_consts(A, vm, label, sfx=''):
    A(f'''s_getpc_b64 s[36:37]
          {label}_pc{sfx}:
          s_add_u32 s36, s36, {label}-{label}_pc{sfx}
          s_addc_u32 s37, s37, 0
          s_mov_b32 s38, {TAB_SIZE}
          s_mov_b32 s39, 0x20000''')
    def ld(reg, soff, imm, tag): A(f'buffer_load_dwordx4 {v(reg, 4)}, {v(VL)}, s[36:39], {soff} offen offset:{imm}'); vm.issue(tag)
    A('s_movk_i32 s28, 3072')
    for i in range(6): ld(C32 + 4 * i, '0' if i < 3 else 's28', 1024 * (i % 3), 'c32')
    A(f's_lshl_b32 s28, {s(S_T)}, 13\ns_add_u32 s28, s28, {TAB_TW1}\ns_add_u32 s29, s28, 4096')
    for i in range(8): ld(TW1 + 4 * i, 's28' if i < 4 else 's29', 1024 * (i & 3), 'tw1')
    for i in range(4):
        A(f's_lshl_b32 s28, {s(S_T)}, 1\ns_xor_b32 s28, s28, {i}\ns_mul_i32 s28, s28, 3072\ns_mul_i32 s29, {s(S_T)}, 12288\ns_add_u32 s28, s28, s29\ns_add_u32 s28, s28, {TAB_F64}')
        for c in range(3): ld(F64 + 12 * i + 4 * c, 's28', 1024 * c, 'f64')
    A(f's_lshl_b32 s28, {s(S_T)}, 13\ns_add_u32 s28, s28, {TAB_TW2}\ns_add_u32 s29, s28, 4096')
    for i in range(8): ld(TW2 + 4 * i, 's28' if i < 4 else 's29', 1024 * (i & 3), 'tw2')

def sf_data(A, vm, sc=''):
    A(f'''s_cmp_eq_u32 {s(S_K)}, 320
          s_cselect_b32 s28, 0, {s(S_K)}
          s_mul_i32 s28, s28, {YS}
          s_lshl_b32 s30, {s(S_T)}, 12
          s_add_u32 s28, s28, s30
          s_add_u32 s28, s28, {WS_Y}
          v_lshrrev_b32 v8, 4, v0
          v_and_b32 v9, 7, v0
          v_xor_b32 v8, v8, v9
          v_lshlrev_b32 v8, 4, v8
          v_lshrrev_b32 v9, 3, v0
          v_lshl_add_u32 v8, v9, 7, v8
          v_xor_b32 v9, 64, v8''')
    for i in range(4):
        A(f's_add_u32 m0, {s(S_LB)}, {1024*i}\ns_add_u32 s29, s28, {1024*i}\nbuffer_load_dwordx4 {"v9" if i & 1 else "v8"}, {s(S_WS,4)}, s29 offen{sc} lds'); vm.issue('y')
    A(f's_mul_i32 s28, {s(S_K)}, {YS}\ns_add_u32 s28, s28, s30\ns_add_u32 s28, s28, {WS_WT}')
    for q in range(4):
        A(f'buffer_load_dwordx4 {v(WTR + 4*q, 4)}, {v(VL)}, {s(S_WS,4)}, s28 offen offset:{1024*q}{sc}'); vm.issue('wt')

def cmul(A, rg, c, sn, conj):
    R, M, o = DRE + 4 * rg, DIM + 4 * rg, TMP
    for q in range(4): A(f'v_mul_f32 {v(o+q)}, {v(R+q)}, {v(c+q)}')
    for q in range(4): A(f'v_mul_f32 {v(o+4+q)}, {v(M+q)}, {v(c+q)}')
    for q in range(4): A(f'v_fma_f32 {v(o+q)}, -{v(M+q)}, {v(sn+q)}, {v(o+q)}' if conj else f'v_fmac_f32 {v(o+q)}, {v(M+q)}, {v(sn+q)}')
    for q in range(4): A(f'v_fmac_f32 {v(o+4+q)}, {v(R+q)}, {v(sn+q)}' if conj else f'v_fma_f32 {v(o+4+q)}, -{v(R+q)}, {v(sn+q)}, {v(o+4+q)}')
    i, d = rg >> 1, 2 * (rg & 1)
    for q in (0, 1): A(f'v_cvt_pk_bf16_f32 {v(fr(OWN, 0, i) + d + q)}, {v(o+2*q)}, {v(o+2*q+1)}')
    for q in (0, 1): A(f'v_cvt_pk_bf16_f32 {v(fr(OWN, 1, i) + d + q)}, {v(o+4+2*q)}, {v(o+4+2*q+1)}')

def cstage(src, cb, i, inv, data_is_a, first):
    C, S_, N = cb, cb + 4, cb + 8
    zr, zi = fr(src, 0, i), fr(src, 1, i)
    ops = [(DRE, C, zr, first), (DIM, C, zi, first), (DRE, N if inv else S_, zi, False), (DIM, S_ if inv else N, zr, False)]
    return [f'{MF32} {v(d, 16)}, {v(z if data_is_a else k, 4)}, {v(k if data_is_a else z, 4)}, {"0" if f else v(d, 16)}' for d, k, z, f in ops]

def exchange_stage(A, name, gen, inv):
    for q in range(4): A(f'ds_write_b128 {v(VB)}, {v(OWN + 4*q, 4)} offset:{1024*q}')
    mf = cstage(OWN, F64, 0, inv, inv, True) + cstage(OWN, F64 + 12, 1, inv, inv, False)
    A.extend(mf[:3])
    A('s_waitcnt lgkmcnt(0)')
    common.sw_arrive(A, VFW, gen, TMP)
    A.extend(mf[3:6])
    common.sw_wait(A, name, VFP, gen, TMP)
    for q in range(4): A(f'ds_read_b128 {v(OTH + 4*q, 4)}, {v(VP)} offset:{1024*q}')
    A.extend(mf[6:])
    A('s_waitcnt lgkmcnt(0)')
    common.sw_arrive(A, VFW, gen + 1, TMP)
    A.extend(cstage(OTH, F64 + 24, 0, inv, inv, False) + cstage(OTH, F64 + 36, 1, inv, inv, False))

def sf_compute(A, vm, name, sc=''):
    A(f'''v_and_b32 v1, 31, v0
          v_lshl_add_u32 v1, v1, 7, {s(S_LB)}
          v_bfe_u32 v12, v0, 1, 3
          v_lshrrev_b32 v13, 5, v0
          v_xor_b32 v12, v12, v13
          s_cmp_eq_u32 {s(S_K)}, 320
          s_cselect_b32 s28, 4, 0
          v_xor_b32 v13, s28, v12''')
    for ks in range(2):
        A(f'v_xor_b32 v14, {2*ks}, v13\nv_lshl_add_u32 {v(8+ks)}, v14, 4, v1')
        A(f'v_xor_b32 v14, {4 + 2*ks}, v12\nv_lshl_add_u32 {v(10+ks)}, v14, 4, v1')
    A(f'''s_cmp_eq_u32 {s(S_K)}, 320
          s_cselect_b32 s25, 0, {s(S_K)}
          s_cselect_b32 s31, {320*US}, 0
          s_mul_i32 s29, s25, 6554
          s_lshr_b32 s29, s29, 16            ; k / 10
          s_mul_i32 s30, s29, 10
          s_sub_u32 s30, s25, s30
          s_lshl_b32 s30, s30, 5
          s_add_u32 s30, s30, s29
          s_mul_i32 s30, s30, {US}
          s_add_u32 s30, s30, s31
          s_lshl_b32 s29, {s(S_T)}, 11
          s_add_u32 s30, s30, s29
          s_add_u32 s26, s30, {WS_U}
          s_add_u32 s27, s26, {320*US}
          v_bfe_u32 v1, v0, 1, 4
          v_lshlrev_b32 v1, 7, v1
          v_and_b32 v12, 1, v0
          v_lshl_add_u32 v1, v12, 5, v1
          v_lshrrev_b32 v12, 5, v0
          v_lshl_add_u32 {v(VST)}, v12, 4, v1
          s_waitcnt vmcnt({vm.count("y", "c32", "tw1")})''')
    for part in range(2):
        for ks in range(2): A(f'ds_read_b128 {v(fr(OTH, part, ks), 4)}, {v(8 + 2*part + ks)}')
    A(f's_cmp_eq_u32 s25, 0\ns_waitcnt lgkmcnt(0)\ns_cbranch_scc0 {name}_cplx')
    for r in range(8): A(f'v_mov_b32 {v(fr(OTH, 1, 0) + r)}, 0')
    A(f's_nop 1\n{name}_cplx:')
    A.extend(cstage(OTH, C32, 0, False, True, True) + cstage(OTH, C32 + 12, 1, False, True, False))
    A('s_nop 10')
    for rg in range(4): cmul(A, rg, TW1 + 8 * rg, TW1 + 8 * rg + 4, False)
    A(f's_waitcnt vmcnt({vm.count("f64")})')
    exchange_stage(A, f'{name}_x1', 1, False)
    A(f's_waitcnt vmcnt({vm.count("wt")})')
    for rg in range(4):
        b = 8 + 8 * (rg & 1)
        for jj in range(4):
            A(f'v_lshlrev_b32 {v(b + jj)}, 16, {v(WTR + 4*rg + jj)}\nv_and_b32 {v(b + 4 + jj)}, 0xffff0000, {v(WTR + 4*rg + jj)}')
        if rg == 0: A('s_nop 3')
        cmul(A, rg, b, b + 4, True)
    common.sw_wait(A, f'{name}_x2p', VFP, 2, TMP)
    exchange_stage(A, f'{name}_x2', 3, True)
    A(f's_waitcnt vmcnt({vm.count("tw2")})\ns_nop 9')
    for rg in range(4): cmul(A, rg, TW2 + 8 * rg, TW2 + 8 * rg + 4, True)
    A('s_nop 0')
    A.extend(cstage(OWN, C32, 0, True, False, True) + cstage(OWN, C32 + 12, 1, True, False, False))
    def pack_store(part):
        d = DIM if part else DRE
        for c in range(2):
            o = OTH + 8 * part + 4 * c
            for q in range(4): A(f'v_cvt_pk_bf16_f32 {v(o + q)}, {v(d + 8*c + 2*q)}, {v(d + 8*c + 2*q + 1)}')
            A(f'buffer_store_dwordx4 {v(o, 4)}, {v(VST)}, {s(S_WS,4)}, {"s27" if part else "s26"} offen offset:{64*c}{sc}')
    A('s_nop 10')
    pack_store(0)
    A(f's_cmp_eq_u32 s25, 0\ns_cbranch_scc1 {name}_noim')
    pack_store(1)
    A(f'{name}_noim:')

def u_signal(A):
    A(f'''s_and_b32 s28, {s(S_K)}, 15
          s_lshl_b32 s28, s28, 7
          s_add_u32 s28, s28, {FL_U}
          v_lshlrev_b32 v8, 11, v0
          v_mov_b32 v9, 1
          s_waitcnt vmcnt(0)
          s_mov_b64 exec, 0xff
          buffer_atomic_add v9, v8, {s(S_WS,4)}, s28 offen sc1
          s_mov_b64 exec, -1''')

TR, ACCS, UF = 152, 72, 56
XR = 40
VXO, VXL, VUR, VUD = 8, 52, 11, 12
PITCH = 336

def x_loads(A, vm):
    A(f'''s_lshr_b32 s28, s19, 1
          s_lshl_b32 s28, s28, 10
          s_lshl_b32 s29, s17, 1
          s_add_u32 s28, s28, s29
          s_and_b32 s29, s19, 1
          s_add_u32 s28, s28, s29
          s_mul_i32 s28, s28, 1280
          s_mul_i32 s29, s18, 160
          s_add_u32 s24, s28, s29
          s_mov_b32 s29, {64*1280}''')
    for p in range(3):
        A(f'''v_add_u32 v16, {64*p}, v0
              v_mul_u32_u24 v17, 6554, v16
              v_lshrrev_b32 v17, 16, v17            ; row m
              v_mul_u32_u24 v18, 10, v17
              v_sub_u32 v16, v16, v18               ; chunk
              v_mul_u32_u24 v18, {PITCH}, v17
              v_lshl_add_u32 {v(VXL+p)}, v16, 5, v18
              v_and_b32 v18, 3, v17
              v_bfe_u32 v19, v17, 2, 1
              v_lshl_add_u32 v18, v19, 3, v18
              v_bfe_u32 v19, v17, 3, 1
              v_lshl_add_u32 v18, v19, 2, v18
              v_mul_lo_u32 v18, v18, s29
              v_lshl_add_u32 {v(VXO+p)}, v16, 4, v18''')
    A(f'v_lshrrev_b32 v16, 5, v0\nv_lshl_or_b32 {v(VXO+2)}, v16, 30, {v(VXO+2)}\nv_min_u32 {v(VXL+2)}, {15*PITCH + 288}, {v(VXL+2)}')
    for p in range(3):
        A(f'buffer_load_dwordx4 {v(XR+4*p, 4)}, {v(VXO+p)}, {s(S_X,4)}, s24 offen'); vm.issue('x')

def tgen(A, mid=None):
    R = lambda t, j: 72 + 16 * t + 8 * (j & 1)
    N, K1, K10, T1 = 24, 29, 34, 56
    A0, SP = 22, 23
    F5 = range(5)
    A(f'''s_lshr_b32 s30, s19, 1              ; part
          s_mul_i32 s34, s30, 0x3e800000
          s_lshl_b32 s30, s30, 31
          s_and_b32 s29, s19, 1
          s_mul_i32 s31, s29, 5
          s_cmp_eq_u32 s29, 0
          s_cselect_b64 s[32:33], 0xffff, 0
          s_mov_b32 s35, {fhex(1.0/640)}
          s_mul_i32 s28, s18, 80
          v_lshlrev_b32 {v(SP)}, 31, v0
          v_and_b32 {v(SP)}, s30, {v(SP)}
          v_xor_b32 {v(SP)}, 0.5, {v(SP)}
          v_lshrrev_b32 {v(A0)}, 4, v0
          v_mul_u32_u24 {v(A0)}, 80, {v(A0)}
          v_add_u32 {v(A0)}, s31, {v(A0)}
          v_cvt_f32_u32 {v(A0)}, {v(A0)}
          v_and_b32 {v(T1)}, 15, v0
          v_add_u32 {v(T1)}, s28, {v(T1)}
          v_cvt_f32_u32 {v(N)}, {v(T1)}''')
    for t in range(1, 5): A(f'v_add_f32 {v(N+t)}, {fhex(16.0*t)}, {v(N)}')
    for t in F5: A(f'v_mul_f32 {v(R(t, 0))}, {v(A0)}, {v(N+t)}')
    for t in F5: A(f'v_mul_f32 {v(T1+t)}, s35, {v(R(t, 0))}')
    for t in F5: A(f'v_mul_f32 {v(K10+t)}, {fhex(1.0/64)}, {v(N+t)}')
    for t in F5: A(f'v_floor_f32 {v(T1+t)}, {v(T1+t)}')
    for t in F5: A(f'v_mul_f32 {v(K1+t)}, s35, {v(N+t)}')
    for t in F5: A(f'v_fmac_f32 {v(R(t, 0))}, {fhex(-640.0)}, {v(T1+t)}')
    for t in F5: A(f'v_fract_f32 {v(K10+t)}, {v(K10+t)}')
    for t in F5: A(f'v_mul_f32 {v(R(t, 0))}, s35, {v(R(t, 0))}')
    for t in F5: A(f'v_add_f32 {v(R(t, 0))}, s34, {v(R(t, 0))}')
    for t in F5: A(f'v_add_f32 {v(R(t, 1))}, {v(R(t, 0))}, {v(K1+t)}')
    for t in F5: A(f'v_add_f32 {v(R(t, 0)+1)}, {v(R(t, 0))}, {v(K10+t)}')
    for t in F5: A(f'v_add_f32 {v(R(t, 1)+1)}, {v(R(t, 1))}, {v(K10+t)}')
    for r in [K10 + t for t in F5] + [R(t, j) + e for t in F5 for j in (0, 1) for e in (0, 1)] + [K1 + t for t in F5]:
        A(f'v_cos_f32 {v(r)}, {v(r)}')
    for t in F5: A(f'v_add_f32 {v(K10+t)}, {v(K10+t)}, {v(K10+t)}')
    for t in F5: A(f'v_add_f32 {v(K1+t)}, {v(K1+t)}, {v(K1+t)}')
    if mid: mid()
    for e in range(2, 8):
        for t in F5:
            for j in (0, 1): A(f'v_fma_f32 {v(R(t, j)+e)}, {v(K10+t)}, {v(R(t, j)+e-1)}, -{v(R(t, j)+e-2)}')
    for t in F5: A(f'v_cndmask_b32 {v(T1+t)}, {v(R(t, 0))}, {v(SP)}, s[32:33]')
    for j in range(5):
        for t in F5:
            row = R(t, j)
            if j >= 2:
                for e in range(8): A(f'v_fma_f32 {v(row+e)}, {v(K1+t)}, {v(R(t, j-1)+e)}, -{v(row+e)}')
            for q in range(4): A(f'v_cvt_pk_bf16_f32 {v(TR + 20*t + 4*j + q)}, {v(T1+t if (j == 0 and q == 0) else row+2*q)}, {v(row+2*q+1)}')

def u_setup(A):
    A(f'''v_lshrrev_b32 v16, 3, v0
          v_mul_u32_u24 v16, {US}, v16
          v_bfe_u32 v17, v0, 1, 2
          v_bfe_u32 v18, v0, 4, 1
          v_xor_b32 v17, v17, v18
          v_and_b32 v18, 1, v0
          v_lshl_add_u32 v16, v18, 4, v16
          v_lshl_add_u32 {v(VUD)}, v17, 5, v16
          v_xor_b32 v17, 2, v17
          v_lshl_add_u32 {v(VUD+1)}, v17, 5, v16
          v_add_u32 {v(VUD+1)}, {8*US}, {v(VUD+1)}
          s_mul_i32 s26, s19, {160*US}
          s_lshl_b32 s28, s17, 7
          s_add_u32 s26, s26, s28
          s_add_u32 s26, s26, {WS_U}
          v_lshrrev_b32 v16, 4, v0             ; g
          v_bfe_u32 v17, v0, 2, 2              ; r
          v_lshl_add_u32 v18, v16, 3, v17
          v_lshlrev_b32 v18, 7, v18
          v_and_b32 v16, 1, v16
          v_lshrrev_b32 v17, 1, v17
          v_lshl_add_u32 v16, v16, 1, v17      ; f = b1 + 2 b3
          v_lshl_add_u32 v18, v16, 5, v18
          v_and_b32 v16, 3, v0
          v_lshl_add_u32 v18, v16, 3, v18
          v_add_u32 {v(VUR)}, {s(S_LB)}, v18
          v_and_b32 v16, 15, v0
          v_lshlrev_b32 v14, 7, v16
          v_cmp_eq_u32 vcc, 0, v16
          v_mov_b32 v15, 40
          s_and_b32 s27, s2, 7
          s_lshl_b32 s27, s27, 11
          s_add_u32 s27, s27, {FL_U}
          v_cndmask_b32 v15, v15, 42, vcc''')

def u_wait(A, name, sleep=6):
    A(f'''v_mov_b32 v21, {L_FLG + 48}
          s_cmp_lg_u32 s19, 0
          s_cbranch_scc1 {name}_l
          {name}:
          buffer_load_dword v16, v14, {s(S_WS,4)}, s27 offen sc1
          s_waitcnt vmcnt(0)
          v_cmp_eq_u32 vcc, v16, v15
          s_cmp_eq_u64 vcc, -1
          s_cbranch_scc1 {name}_s
          s_sleep {sleep}
          {common.AGAIN(name)}
          {name}_s:
          ds_write_b32 v21, v15
          s_branch {name}_ok
          {name}_l:
          ds_read_b32 v16, v21
          s_waitcnt lgkmcnt(0)
          v_readfirstlane_b32 s28, v16
          s_cmp_lg_u32 s28, 0
          s_cbranch_scc1 {name}_ok
          s_sleep 1
          {common.AGAIN(name + '_l')}
          {name}_ok:''')

def idft(A, name, sc=''):
    vm = VM()
    A(f's_mul_i32 s25, s19, 15360\ns_add_u32 s25, s25, {L_BIG}')
    def dma(jj):
        for i in range(4):
            base = (s(S_LB), 4096 * jj) if jj < 2 else ('s25', 4096 * (jj - 2))
            A(f's_add_u32 m0, {base[0]}, {base[1] + 1024*i}\ns_add_u32 s29, s26, {(32*jj + 16*(i >> 1)) * US}\nbuffer_load_dwordx4 {v(VUD + (i & 1))}, {s(S_WS,4)}, s29 offen{sc} lds')
            vm.issue(jj)
    dma(0); dma(1)
    common.sw_addr(A, 21, L_FLG)
    common.sw_wait(A, f'{name}_big', 21, 10, TMP, sleep=1)
    dma(2); dma(3); dma(4)
    A(f's_sub_u32 s28, s25, {s(S_LB)}')
    for rg in range(1, 4): A(f'v_xor_b32 {v(15 + rg)}, {32*rg}, {v(VUR)}')
    def rd(jj, rg):
        b = UF + 4 * (rg & 1) + 8 * (rg >> 1)
        return [f'ds_read_b64_tr_b16 {v(UF + 4*rg + 2*q, 2)}, {v(VUR if rg == 0 else 15 + rg)} offset:{4096*(jj if jj < 2 else jj - 2) + 512*q}' for q in range(2)]
    A(f's_waitcnt vmcnt({vm.count(0)})')
    for rg in range(4): A.extend(rd(0, rg))
    for jj in range(5):
        for rg in range(4):
            A(f's_waitcnt lgkmcnt({6 if jj < 4 else 6 - 2*rg})')
            for t in range(5):
                d = ACCS + 20 * rg + 4 * t
                A(f'{MF16} {v(d, 4)}, {v(TR + 20*t + 4*jj, 4)}, {v(UF + 4*rg, 4)}, {"0" if jj == 0 else v(d, 4)}')
                if t == 3 and rg == 0 and jj < 4:
                    A(f's_waitcnt vmcnt({vm.count(jj + 1)})')
                    if jj == 1:
                        for r in (VUR, 16, 17, 18): A(f'v_add_u32 {v(r)}, s28, {v(r)}')
            if jj < 4: A.extend(rd(jj + 1, rg))

def reduce_final(A, name):
    SUM, RD, XF, GT = 152, 172, 24, 232
    VW, VR = 16, 17
    A(f'v_add_u32 {v(VW)}, s25, {v(VL)}')
    for d in range(1, 4):
        A(f's_sub_u32 s28, s19, {d}\ns_and_b32 s28, s28, 3\ns_mul_i32 s28, s28, 15360\ns_add_u32 s28, s28, {L_BIG + 5120*(d-1)}\nv_add_u32 {v(VR + d)}, s28, {v(VL)}')
    for f in range(4):
        if f < 3: A(f's_cmp_lg_u32 s19, {f}\ns_cbranch_scc1 {name}_w{f+1}')
        for d in sorted(range(1, 4), key=lambda d: (f + d) & 3):
            for t in range(5):
                A(f'ds_write_b128 {v(VW)}, {v(ACCS + 20*((f + d) & 3) + 4*t, 4)} offset:{1024*(5*(d-1) + t)}')
        for r in range(20): A(f'v_mov_b32 {v(SUM + r)}, {v(ACCS + 20*f + r)}')
        if f < 3: A(f's_branch {name}_wd\n{name}_w{f+1}:')
    A(f'{name}_wd:')
    A(f's_mul_i32 s28, s19, 5120\ns_add_u32 s28, s28, {L_GATE}\nv_add_u32 v22, s28, {v(VL)}\nv_add_u32 v23, 16, {v(VFW)}')
    common.sw_addr(A, 21, L_FLG + 16)
    A('s_waitcnt lgkmcnt(0)')
    common.sw_arrive(A, VFW, 5, 12)
    for r in range(12): A(f'v_lshlrev_b32 {v(72 + 2*r)}, 16, {v(XR + r)}\nv_and_b32 {v(72 + 2*r + 1)}, 0xffff0000, {v(XR + r)}')
    A(f'''v_and_b32 v56, 15, v0
          v_mul_u32_u24 v56, {PITCH}, v56
          v_lshrrev_b32 v57, 4, v0
          v_lshl_add_u32 v56, v57, 4, v56
          v_add_u32 v56, {s(S_LB)}, v56''')
    for p in range(3): A(f'v_add_u32 {v(VXL+p)}, {s(S_LB)}, {v(VXL+p)}')
    common.sw_wait(A, f'{name}_r1', 21, 5, 12)
    for d in range(1, 4):
        for t in range(5): A(f'ds_read_b128 {v(RD + 20*(d-1) + 4*t, 4)}, {v(VR + d)} offset:{1024*t}')
    for d in range(3):
        A(f's_waitcnt lgkmcnt({10 - 5*d})')
        for r in range(20): A(f'v_add_f32 {v(SUM + r)}, {v(SUM + r)}, {v(RD + 20*d + r)}')
    A(f'''{name}_gw:
          ds_read_b32 v12, v23
          s_waitcnt lgkmcnt(0)
          v_readfirstlane_b32 s28, v12
          s_cmp_lg_u32 s28, 0
          s_cbranch_scc1 {name}_gwo
          {common.AGAIN(name + '_gw')}
          {name}_gwo:''')
    for t in range(5): A(f'ds_read_b128 {v(GT + 4*t, 4)}, v22 offset:{1024*t}')
    for t in range(5):
        A(f's_waitcnt lgkmcnt(4)')
        for r in range(4 * t, 4 * t + 4): A(f'v_mul_f32 {v(SUM + r)}, {v(SUM + r)}, {v(GT + r)}')
        A(f'ds_write_b128 v56, {v(SUM + 4*t, 4)} offset:{64*t}')
    for p in range(3):
        for q in range(2): A(f'ds_read_b128 {v(RD + 8*p + 4*q, 4)}, {v(VXL+p)} offset:{16*q}')
    for p in range(3):
        A(f's_waitcnt lgkmcnt({4 - 2*p})')
        for r in range(8 * p, 8 * p + 8): A(f'v_add_f32 {v(72 + r)}, {v(72 + r)}, {v(RD + r)}')
        for r in range(4 * p, 4 * p + 4): A(f'v_cvt_pk_bf16_f32 {v(XR + r)}, {v(72 + 2*r)}, {v(72 + 2*r + 1)}')
        A(f'buffer_store_dwordx4 {v(XR+4*p, 4)}, {v(VXO+p)}, {s(S_O,4)}, s24 offen')
```

```python
import sys
sys.path.insert(0, 'dev')
from asmlib import *
from layout import *
import common, f1, g1, p2
from build1 import HEADER
NAME = 'recurrent_scan__spectral_gfnet__glu_gated_geglu__prompt_kernel'
SO, SI = ' sc0 sc1', ''
WS = 's[12:15]'
PRE = {1: 2, 2: 2, 3: 2, 4: 2, 5: 2, 6: 2, 9: 18}

def ws_srd(A):
    A(f's_mov_b32 s12, s58\ns_mov_b32 s13, s59\ns_mov_b32 s14, {WS_SIZE}\ns_mov_b32 s15, 0x20000')
def p2_ids(A):
    A('''s_and_b32 s28, s2, 7
         s_lshr_b32 s29, s2, 3
         s_and_b32 s18, s29, 7
         s_lshr_b32 s29, s29, 3
         s_lshl_b32 s17, s28, 2
         s_add_u32 s17, s17, s29
         s_and_b32 s19, s16, 3''')
def replica(A, dst, line):
    A(f's_and_b32 {dst}, s2, 7\ns_lshl_b32 {dst}, {dst}, 10\ns_add_u32 {dst}, {dst}, {FL_R + 128*line}')

def kernel(prof=False, pf=False, wdpf=True):
    A = Asm()
    st = lambda i: common.stamp(A, i, prof)
    def stw(i):
        st(i)
        if prof: A('s_waitcnt lgkmcnt(0)')
    def fin():
        if prof: A('s_waitcnt vmcnt(0)')
        st(14); common.stamp_rt(A, 15, prof); common.stamp_flush(A, prof, 0)
        A('s_endpgm')
    common.stamp_init(A, prof)
    common.stamp_rt(A, 0, prof); st(1)
    common.entry(A)
    A(f'''s_cmp_ge_u32 s2, 256
         s_cbranch_scc1 k_done
         v_lshlrev_b32 v1, 2, v0
         v_add_u32 v1, {p2.L_FLG}, v1
         v_mov_b32 v2, 0
         ds_write_b32 v1, v2
         s_cmp_lt_u32 s2, 64
         s_cbranch_scc1 k_f
         s_sub_u32 s34, s2, 64
         s_and_b32 s28, s2, 7
         s_lshr_b32 s29, s34, 3
         s_mul_i32 s30, s29, 43
         s_lshr_b32 s30, s30, 7
         s_mul_i32 s31, s30, 3
         s_sub_u32 s31, s29, s31
         s_lshr_b32 s17, s28, 2
         s_lshl_b32 s17, s17, 3
         s_add_u32 s17, s17, s30
         s_and_b32 s18, s28, 3
         s_mul_i32 s18, s18, 3
         s_add_u32 s18, s18, s31
         s_and_b32 s19, s16, 3
         s_cmp_lt_u32 s16, 4
         s_cbranch_scc1 k_gc''')
    A.block('k_gl')
    g1.loader_addr(A)
    A('s_waitcnt lgkmcnt(0)'); ws_srd(A); st(2)
    def wait_aux(A):
        A('s_cmp_lg_u32 s19, 0\ns_cbranch_scc1 k_aux_ok')
        common.wait_cleared(A, 'k_clr1', 41, 42)
        A(f's_and_b32 s29, s2, 7\ns_lshl_b32 s29, s29, 7\ns_add_u32 s29, s29, {FL_A}\nv_mov_b32 v43, 64')
        common.poll_lines(A, 'k_aux', WS, 's29', 41, 43, 42, 4)
    g1.loader(A, 'k', pf=pf, wait_aux=wait_aux); st(3)
    A('s_branch k_p2f')
    A.block('k_gc')
    common.code_prefetch(A, 'k_pf1', NAME, 'k_end-' + NAME + '-4', 20)
    g1.compute_setup(A)
    A('s_waitcnt lgkmcnt(0)'); ws_srd(A)
    A(f'''s_cmp_lg_u32 s2, 64
          s_cbranch_scc1 k_noclr
          s_cmp_lg_u32 s16, 0
          s_cbranch_scc1 k_noclr
          v_lshlrev_b32 v30, 7, v0
          v_mov_b32 v31, 0
          v_mov_b32 v32, 0\nv_mov_b32 v33, 0\nv_mov_b32 v34, 0\nv_mov_b32 v35, 0
          s_mov_b32 s28, {WS_FL}''')
    for i in range(3): A(f'buffer_store_dwordx4 v[32:35], v30, {WS}, s28 offen{SO}\ns_add_u32 s28, s28, 8192')
    A(f'''v_mov_b32 v30, 1
          s_waitcnt vmcnt(0)
          global_store_dword v31, v30, s[56:57] offset:128{SO}
          k_noclr:''')
    st(2)
    A('s_setprio 2')
    g1.mainloop(A, 'g1', sc=SI, stamp=lambda: st(3)); st(4)
    g1.ext_apply(A)
    A(f's_lshl_b32 s60, s17, 1\ns_lshr_b32 s28, s19, 1\ns_add_u32 s60, s60, s28\ns_lshl_b32 s60, s60, 7\ns_add_u32 s60, s60, {FL_H}')
    p2_ids(A); p2.g_setup(A)
    A(f'v_mov_b32 v19, 1\nds_write_b32 {v(p2.VFO)}, v19 offset:64')
    vm = VM()
    pre = [d for g in range(6) for d in p2.wd_dma(g, SI)]
    def hook(n):
        if n == 9:
            common.sw_addr(A, 20, p2.L_FLG + 64)
            common.sw_wait(A, 'k_g1done', 20, 1, 24)
        k = PRE.get(n, 0)
        for d in pre[:k]: A.extend(d)
        del pre[:k]
    g1.epilogue(A, sc=SO, hook=hook); st(5)
    A(f'''v_mov_b32 v16, 0
          v_mov_b32 v17, 1
          s_waitcnt vmcnt(0)
          s_mov_b64 exec, 1
          buffer_atomic_add v17, v16, {WS}, s60 offen sc1
          s_mov_b64 exec, -1'''); common.lds_set(A, p2.L_FLG + 100, 16, 17); st(6)
    hook(9); assert not pre
    A('s_branch k_p2g')
    A.block('k_f')
    vm = VM()
    A('''s_and_b32 s28, s2, 7
         s_lshl_b32 s17, s28, 3
         s_lshr_b32 s29, s2, 3
         s_add_u32 s17, s17, s29''')
    A('s_cmp_ge_u32 s16, 4\ns_cbranch_scc1 k_fs')
    f1.issue_addr(A)
    A('s_waitcnt lgkmcnt(0)')
    f1.issue_x(A, vm); ws_srd(A); A('s_barrier'); stw(2)
    def landed():
        common.lds_set(A, f1.L_FL + 36, 10, 11); A('s_waitcnt lgkmcnt(0)')
    f1.layernorm(A, vm, landed)
    A(f's_lshl_b32 s28, s16, 2\ns_add_u32 s28, s28, {p2.L_FLG + 80}\nv_mov_b32 v8, s28\ns_mov_b32 s36, s16\ns_waitcnt lgkmcnt(0)')
    common.sw_arrive(A, 8, 1, 10)
    A.block('k_lnw')
    common.sw_addr(A, 9, p2.L_FLG + 80)
    common.sw_wait(A, 'k_lnsw', 9, 1, 12); stw(3)
    f1.dft(A, sc=SO); st(4)
    A('s_waitcnt vmcnt(0)\ns_barrier\ns_cmp_ge_u32 s16, 4\ns_cbranch_scc1 k_p2f\ns_cmp_lg_u32 s16, 0\ns_cbranch_scc1 k_ysig')
    common.ssignal2(A, 'k_ysig', 2, 64); st(5)
    p2_ids(A); p2.g_setup(A)
    common.lds_wait(A, 'k_yissued', p2.L_FLG + 56, 16, 17, sleep=2)
    p2.g_prefill(A, VM(), range(6), SI); st(6)
    A.block('k_p2g')
    A(f'''s_lshl_b32 s61, s17, 7
          s_add_u32 s61, s61, {FL_H}
          v_mov_b32 v16, 0
          v_mov_b32 v18, 24
          v_mov_b32 v20, {p2.L_FLG + 52}
          s_setprio 2
          s_cmp_gt_u32 s2, 64
          s_cbranch_scc1 k_hl
          s_cmp_lg_u32 s19, 0
          s_cbranch_scc1 k_hl''')
    common.poll_lines(A, 'k_h', WS, 's61', 16, 18, 17, 3)
    A('ds_write_b32 v20, v18\ns_branch k_hd\nk_hl:')
    common.lds_wait(A, 'k_hl2', p2.L_FLG + 52, 20, 17)
    A('k_hd:'); st(7)
    gst = {3: 8, 4: 9}
    slow = Asm()
    p2.g_main(A, VM(), 'k', 6, slow, sc=SI, stamp=lambda i: stw(gst[i]))
    fin()
    A.block('k_slow', label=False); A.extend(slow.text().split('\n'))
    A.block('k_fs')
    vm = VM()
    common.code_prefetch(A, 'k_pf2', NAME, 'k_end-' + NAME + '-4', 20); vm.issue('pf')
    f1.clear_flags(A)
    A('s_waitcnt lgkmcnt(0)\ns_barrier'); ws_srd(A)
    f1.side_ids(A)
    A('s_cmp_ge_u32 s18, 2\ns_cbranch_scc1 k_fw')
    f1.selectors(A)
    common.lds_wait(A, 'k_xl', f1.L_FL + 36, 1, 2)
    f1.cs_issue(A, vm)
    common.lds_set(A, f1.L_FL + 40, 1, 2); stw(2)
    def mid2():
        common.sw_addr(A, 9, p2.L_FLG + 80)
        common.sw_wait(A, 'k_lnsw2', 9, 1, 12)
        common.lds_wait(A, 'k_clr4', f1.L_FL + 32, 1, 2)
        f1.stats_store(A, vm, SO)
    f1.colsum_part(A, vm, 1, lambda: f1.wt_issue(A, vm), mid2)
    sig = Asm(); sig(f's_mov_b32 s28, {FL_A}\ns_waitcnt vmcnt(0)'); common.signal8(sig, WS, 's28', 128, 1, 2)
    f1.colsum_final(A, sc=SO, after=sig.text()); stw(3)
    A('s_and_b32 s19, s16, 3'); p2.f_setup(A)
    p2.sf_consts(A, VM(), 'sf_tab', '0')
    stw(4)
    f1.wt_job(A, VM(), SO); st(5)
    A('s_waitcnt vmcnt(0)\ns_barrier'); st(6)
    p2_ids(A); p2.f_setup(A); p2.srds(A)
    A(f's_mov_b32 {s(p2.S_K)}, s2\ns_branch k_p2c')
    A.block('k_fw')
    vm = VM()
    A('s_cmp_lg_u32 s16, 7\ns_cbranch_scc1 k_clr2_skip')
    common.wait_cleared(A, 'k_clr2', 1, 2); common.lds_set(A, f1.L_FL + 32, 1, 2)
    A('k_clr2_skip:')
    common.lds_wait(A, 'k_csi', f1.L_FL + 40, 1, 2)
    f1.wd_touch(A); stw(2)
    A('s_add_u32 s36, s16, 2')
    A('s_branch k_lnw')
    A.block('k_p2f')
    p2_ids(A); p2.f_setup(A); p2.srds(A)
    A(f'''s_lshr_b32 s28, s19, 1
          s_lshl_b32 s28, s28, 8
          s_add_u32 {s(p2.S_K)}, s2, s28
          s_cmp_gt_u32 {s(p2.S_K)}, 320
          s_cbranch_scc1 k_idle''')
    vm = VM()
    p2.sf_consts(A, vm, 'sf_tab', '1')
    A.block('k_p2c'); st(7)
    A('s_cmp_lg_u32 s19, 0\ns_cbranch_scc1 k_yl')
    common.poll_go(A, 'k_yp', WS, 2, 16, 17, 3)
    common.lds_set(A, p2.L_FLG + 60, 16, 17)
    A('s_branch k_yl_ok\nk_yl:')
    tmp = Asm(); common.lds_wait(tmp, 'k_yl2', p2.L_FLG + 60, 16, 17); A.extend(tmp.text().split('\n'))
    A('k_yl_ok:'); st(8)
    p2.sf_data(A, vm, SI)
    common.lds_set(A, p2.L_FLG + 56, 16, 17)
    p2.sf_compute(A, vm, 'k', sc=SO); st(9)
    A('s_mov_b32 s60, 1\ns_branch k_join\nk_idle:\ns_mov_b32 s60, 0\nk_join:')
    def mid():
        A('s_cmp_eq_u32 s60, 0\ns_cbranch_scc1 k_nosig')
        p2.u_signal(A)
        common.sw_wait(A, 'k_x4', p2.VFP, 4, 12)
        A('k_nosig:'); st(10)
        p2.x_loads(A, VM())
    p2.tgen(A, mid)
    p2.u_setup(A); st(11)
    A(f'''s_cmp_lg_u32 s60, 0
          s_cbranch_scc1 k_h2_skip
          s_cmp_lg_u32 s19, 2
          s_cbranch_scc1 k_h2_skip
          s_lshl_b32 s61, s17, 7
          s_add_u32 s61, s61, {FL_H}
          v_mov_b32 v16, 0
          v_mov_b32 v18, 24''')
    common.lds_wait(A, 'k_h2w', p2.L_FLG + 84 + 16, 19, 17, sleep=4)
    common.poll_lines(A, 'k_h2', WS, 's61', 16, 18, 17, 2)
    common.lds_set(A, p2.L_FLG + 52, 16, 17)
    A('k_h2_skip:')
    p2.u_wait(A, 'k_uw'); st(12); A('s_waitcnt lgkmcnt(0)')
    p2.idft(A, 'k', sc=SI); st(13)
    p2.reduce_final(A, 'k')
    fin()
    A.block('k_done'); A('s_endpgm')
    n0 = A.blocks[0][0]
    for path in ([n0, 'k_gl', 'k_p2f', 'k_p2c'], [n0, 'k_gc', 'g1_loop', 'g1_loop', 'g1_epi', 'k_p2g'], [n0, 'k_f', 'k_lnw', 'f1_dft', 'f1_unit', 'f1_unit', 'f1_unit_end', 'k_p2g'], [n0, 'k_fs', 'k_p2c'], ['k_fw', 'k_lnw', 'f1_dft', 'f1_unit', 'f1_unit_end']):
        A.check(path)
    return khead(NAME) + A.text() + data_asm('sf_tab', sfft_tables()) + 'k_end:\n' + kdesc(NAME, 256)

def build(prof=False, **kw):
    return HEADER + '; @launch grid=(256,1,1) block=(512,1,1) lds=163840\n.amdgcn_target "amdgcn-amd-amdhsa--gfx950"\n' + kernel(prof, **kw)

if __name__ == '__main__':
    open('v4.s', 'w').write(build())
    open('v4_prof.s', 'w').write(build(prof=True))
    open('v4_pf.s', 'w').write(build(prof=True, pf=True))
    open('v4_nowdpf.s', 'w').write(build(prof=True, wdpf=False))
    import rt
    for f in ('v4.s', 'v4_prof.s'):
        co = rt.build(open('dev/' + f).read(), '_chk', NAME); print(f, rt.cl.address_register_problem(co, NAME))
```

```python
from asmlib import *
from layout import *
import math, layout

LOG2E = 1.4426950408889634
GC1 = -2 * math.sqrt(2 / math.pi) * LOG2E
GC2 = GC1 * 0.044715

STAGE = 49152
ACC = 128
XB = (64, 88); WB = (72, 96)
VXA, VWA = 2, 6
VC = 48
VCS, VSTAT = 112, 116
VST = 13
S_X, S_W, S_WS = 4, 8, 12
S_CNT, S_DELTA = 24, 25

def acc(i, t): return ACC + 16 * (4 * i + t)

def loader_addr(A):
    A('''v_lshrrev_b32 v30, 3, v0            ; r = l>>3 (0..7)
         v_and_b32 v31, 3, v30
         v_lshrrev_b32 v32, 2, v30
         v_lshl_add_u32 v31, v32, 3, v31
         s_and_b32 s28, s19, 1
         s_lshl_b32 s28, s28, 4              ; 16c
         v_add_u32 v31, s28, v31
         s_lshr_b32 s29, s19, 1
         s_lshl_b32 s30, s17, 1
         s_add_u32 s29, s29, s30             ; b
         s_lshl_b32 s29, s29, 1              ; 2b
         v_lshl_add_u32 v31, v31, 6, s29     ; s = 64 s1 + 2b
         v_mul_u32_u24 v31, 1280, v31
         v_and_b32 v32, 7, v0
         v_lshrrev_b32 v33, 4, v0            ; (rho>>1)&7 = 4(n&1) + (l>>4)
         v_xor_b32 v34, v32, v33
         v_lshl_add_u32 v10, v34, 4, v31
         v_xor_b32 v34, 4, v34
         v_lshl_add_u32 v11, v34, 4, v31''')
    A(f'v_add_u32 v11, {4*64*1280}, v11\nv_add_u32 v12, 1280, v10\nv_add_u32 v13, 1280, v11')
    A('''v_lshrrev_b32 v30, 4, v0
         s_lshr_b32 s28, s19, 1
         s_lshl_b32 s28, s28, 2              ; 4 up
         v_or_b32 v31, s28, v30
         v_bfe_u32 v32, v0, 1, 3
         v_xor_b32 v31, v31, v32
         v_lshlrev_b32 v31, 5, v31
         v_and_b32 v32, 1, v0
         v_lshl_add_u32 v31, v32, 4, v31
         v_mul_u32_u24 v30, 3072, v30
         v_add_u32 v20, v30, v31''')
    for m in range(1, 8):
        A(f'v_add_u32 {v(20+m)}, {8*3072*m}, v20')
    A(f'''s_and_b32 s28, s19, 1
          s_mul_i32 s21, s28, {4*3072}
          s_lshl_b32 s29, s18, 8
          s_add_u32 s21, s21, s29
          s_lshl_b32 s22, s19, 12
          s_lshr_b32 s23, s19, 1
          s_lshl_b32 s23, s23, 14
          s_lshl_b32 s28, s28, 10
          s_add_u32 s23, s23, s28
          s_add_u32 s23, s23, 16384
          s_mov_b32 s20, 0''')

def srds(A):
    A(f's_mov_b32 s4, s40\ns_mov_b32 s5, s41\ns_mov_b32 s6, {S*D*2}\ns_mov_b32 s7, 0x20000')
    A(f's_cmp_lt_u32 s19, 2\ns_cselect_b32 s8, s48, s50\ns_cselect_b32 s9, s49, s51')
    A(f's_mov_b32 s10, {D*F*2}\ns_mov_b32 s11, 0x20000')

def issue_slab(A, vm, sl, lo=0, hi=12):
    st = (sl % 3) * STAGE
    order = [('x', 0), ('x', 1), ('x', 2), ('x', 3)] + [('w', m) for m in range(8)]
    for k, n in order[lo:hi]:
        if k == 'x':
            A(f's_add_u32 m0, s22, {st + 1024*n}\ns_nop 0\nbuffer_load_dwordx4 {v(10 + n)}, {s(S_X, 4)}, s20 offen lds')
        else:
            A(f's_add_u32 m0, s23, {st + 2048*n}\ns_nop 0\nbuffer_load_dwordx4 {v(20 + n)}, {s(S_W, 4)}, s21 offen lds')
        vm.issue(sl)
    if hi == 12: A(f's_add_u32 s20, s20, 128\ns_add_u32 s21, s21, {64*3072}')

def prefetch(A, vm, name):
    A(f'''s_lshl_b32 s28, s34, 2
          s_add_u32 s28, s28, s19             ; 0..767
          s_cmp_ge_u32 s28, 320
          s_cbranch_scc1 {name}_pfw
          s_mul_i32 s28, s28, 45
          v_min_u32 v30, 44, v0
          v_add_u32 v30, s28, v30
          v_mul_u32_u24 v31, 9363, v30
          v_lshrrev_b32 v31, 16, v31          ; row = n / 7
          v_mul_u32_u24 v32, 7, v31
          v_sub_u32 v30, v30, v32
          v_mul_u32_u24 v31, 1280, v31
          v_lshl_add_u32 v30, v30, 7, v31
          buffer_load_dword v40, v30, {s(S_X, 4)}, 0 offen offset:384
          s_branch {name}_pfd
          {name}_pfw:
          s_sub_u32 s28, s28, 320
          s_cmp_ge_u32 s28, 224
          s_cselect_b32 s36, s50, s48
          s_cselect_b32 s37, s51, s49
          s_cselect_b32 s29, 224, 0
          s_mov_b32 s38, {D*F*2}
          s_mov_b32 s39, 0x20000
          s_sub_u32 s28, s28, s29
          s_mul_i32 s28, s28, 6144
          s_add_u32 s28, s28, {192*3072}
          v_min_u32 v30, 47, v0
          v_lshlrev_b32 v30, 7, v30
          buffer_load_dword v40, v30, s[36:39], s28 offen
          {name}_pfd:''')
    vm.issue('pf')

def wd_setup(A, nl):
    A(f'''s_mov_b32 s36, s52\ns_mov_b32 s37, s53\ns_mov_b32 s38, {F*D*2}\ns_mov_b32 s39, 0x20000
          s_lshr_b32 s35, s34, 3
          s_lshl_b32 s35, s35, 2
          s_add_u32 s35, s35, s19
          s_mul_i32 s35, s35, {128*nl}
          s_and_b32 s28, s2, 1
          s_mul_i32 s28, s28, {768*1280}
          s_add_u32 s35, s35, s28
          v_lshlrev_b32 v44, 7, v0
          v_mov_b32 v45, 0x40000000
          v_cmp_gt_u32 vcc, {nl}, v0
          s_nop 1
          v_cndmask_b32 v44, v45, v44, vcc''')
def wd_step(A, vm, nl):
    A(f'buffer_load_dword v40, v44, s[36:39], s35 offen\ns_add_u32 s35, s35, {96*128*nl}'); vm.issue('pf')

def loader(A, name, pf=True, wait_aux=None, wdsteps=(1, 2, 3, 4, 5, 6, 7), ahead=0):
    vm = VM()
    srds(A)
    nl = -(-80 // len(wdsteps)) if wdsteps else 0
    issue_slab(A, vm, 0); issue_slab(A, vm, 1, 0, 5)
    if wdsteps: wd_setup(A, nl)
    A(f's_waitcnt vmcnt({vm.count(0)})\ns_barrier')
    issue_slab(A, vm, 1, 5, 12)
    issue_slab(A, vm, 2, 0, 4)
    A(f's_waitcnt vmcnt({vm.count(1)})\ns_barrier')
    issue_slab(A, vm, 2, 4, 12); issue_slab(A, vm, 3, 0, 6)
    A(f's_waitcnt vmcnt({vm.count(2)})\ns_barrier')
    issue_slab(A, vm, 3, 6, 12); issue_slab(A, vm, 4)
    if 1 in wdsteps: wd_step(A, vm, nl)
    for sl in range(2, 9):
        if sl == 8 and wait_aux: wait_aux(A)
        A(f's_waitcnt vmcnt({vm.count(sl + 1)})\ns_barrier')
        if sl + 3 < 10: issue_slab(A, vm, sl + 3)
        if sl in wdsteps: wd_step(A, vm, nl)

def reads(buf, j):
    xb, wb = XB[buf], WB[buf]
    def xr(i): return f'ds_read_b128 {v(xb + 4*i, 4)}, {v(VXA + j)} offset:{4096*i}'
    def wr(t, q): return f'ds_read_b64_tr_b16 {v(wb + 4*t + 2*q, 2)}, {v(VWA + t)} offset:{(16*j + 4*q) * 256}'
    return [xr(0), wr(0, 0), wr(0, 1), xr(1), wr(1, 0), wr(1, 1), wr(2, 0), wr(2, 1), wr(3, 0), wr(3, 1)]

def mfmas(buf):
    xb, wb = XB[buf], WB[buf]
    return [f'v_mfma_f32_32x32x16_bf16 {v(acc(i, t), 16)}, {v(wb + 4*t, 4)}, {v(xb + 4*i, 4)}, {v(acc(i, t), 16)}'
            for t in range(4) for i in range(2)]

def compute_setup(A):
    A('''v_and_b32 v30, 31, v0
         s_lshr_b32 s28, s19, 1
         s_lshl_b32 s28, s28, 13
         v_lshl_add_u32 v31, v30, 7, s28
         v_bfe_u32 v32, v0, 1, 3
         v_lshrrev_b32 v33, 5, v0
         v_xor_b32 v32, v32, v33''')
    for j in range(4):
        A(f'v_xor_b32 v33, {2*j}, v32\nv_lshl_add_u32 {v(VXA+j)}, v33, 4, v31')
    A('''v_bfe_u32 v30, v0, 4, 1             ; up
         v_bfe_u32 v31, v0, 2, 2             ; r
         v_lshrrev_b32 v32, 5, v0            ; h
         v_lshl_add_u32 v33, v32, 3, v31     ; 8h + r
         v_lshlrev_b32 v33, 8, v33
         v_lshl_add_u32 v33, v30, 14, v33
         v_and_b32 v34, 3, v0
         v_lshl_add_u32 v33, v34, 3, v33
         v_add_u32 v33, 16384, v33
         v_lshl_add_u32 v31, v30, 2, v31     ; r + 4up
         s_and_b32 s28, s19, 1
         s_lshl_b32 s28, s28, 2
         v_xor_b32 v31, s28, v31''')
    for t in range(4):
        A(f'v_xor_b32 v34, {t}, v31\nv_lshl_add_u32 {v(VWA+t)}, v34, 5, v33')
    for r in range(ACC, ACC + 128):
        A(f'v_mov_b32 {v(r)}, 0')
    A(f'''v_bfe_u32 v30, v0, 4, 1
          v_mul_u32_u24 v30, {layout.HS}, v30
          v_lshrrev_b32 v31, 5, v0
          v_lshl_add_u32 v30, v31, 8, v30
          v_and_b32 v31, 15, v0
          v_lshl_add_u32 {v(VST)}, v31, 4, v30
          v_and_b32 v30, 31, v0
          v_lshlrev_b32 v15, 3, v30
          v_lshlrev_b32 v14, 2, v30
          s_lshl_b32 s26, s18, 1
          s_and_b32 s29, s19, 1
          s_add_u32 s26, s26, s29
          s_lshl_b32 s26, s26, 9
          s_add_u32 s26, s26, {WS_CS}
          s_lshl_b32 s27, s17, 1
          s_lshr_b32 s30, s19, 1
          s_add_u32 s27, s27, s30
          s_lshl_b32 s27, s27, 9
          s_add_u32 s27, s27, {WS_ST}
          s_mov_b32 s32, {STAGE}
          s_mov_b32 s33, {-2*STAGE}
          s_mov_b32 {s(S_CNT)}, 0
          s_mov_b32 s29, 0''')

def ext_loads(sc):
    L = [f'buffer_load_dword {v(VCS + t)}, v14, {s(S_WS, 4)}, s26 offen offset:{128*t}{sc}' for t in range(4)]
    L += [f'buffer_load_dwordx2 {v(VSTAT + 2*i, 2)}, v15, {s(S_WS, 4)}, s27 offen offset:{256*i}{sc}' for i in range(2)]
    return L

def slab(A, last=False, sc='', more=()):
    for j in range(4):
        buf = j & 1
        rd = reads(buf ^ 1, (j + 1) & 3) if not (last and j == 3) else []
        A('s_waitcnt lgkmcnt(0)')
        if j == 3 and not last: A('s_barrier')
        ext = ext_loads(sc) if (last and j == 0) else list(more) if (last and j == 1) else []
        k = 0
        for g, m in enumerate(mfmas(buf)):
            A(m)
            A.extend(rd[2*g:2*g + 2])
            if g >= 2: A.extend(ext[g - 2:g - 1])
            if j == 2 and not last:
                if g == 4: A.extend([f's_add_u32 s29, s29, 1', 's_cmp_eq_u32 s29, 3', f's_cselect_b32 {s(S_DELTA)}, s33, s32', 's_cselect_b32 s29, 0, s29'])
                if g == 5: A.extend([f'v_add_u32 {v(VXA+q)}, {s(S_DELTA)}, {v(VXA+q)}' for q in range(4)])
                if g == 6: A.extend([f'v_add_u32 {v(VWA+q)}, {s(S_DELTA)}, {v(VWA+q)}' for q in range(4)])
            if j == 3 and g == 5 and not last:
                A(f's_add_u32 {s(S_CNT)}, {s(S_CNT)}, 1\ns_cmp_lt_u32 {s(S_CNT)}, 9')

def mainloop(A, name, sc='', stamp=lambda: None, more=()):
    A('s_barrier')
    stamp()
    A.extend(reads(0, 0))
    A.block(name + '_loop')
    slab(A)
    A(f's_cbranch_scc1 {name}_loop')
    A.block(name + '_epi')
    slab(A, last=True, sc=sc, more=more)

def ext_apply(A):
    xb, wb = XB[0], WB[0]
    A('v_cmp_gt_u32 vcc, 32, v0')
    for t in range(4):
        for q in range(1, 4): A(f'v_mov_b32 {v(wb + 4*t + q)}, 0')
    for i in range(2):
        for q in range(1, 4): A(f'v_mov_b32 {v(xb + 4*i + q)}, 0')
    A('s_waitcnt vmcnt(0)')
    for t in range(4): A(f'v_mov_b32 {v(wb + 4*t)}, {v(VCS + t)}')
    for i in range(2): A(f'v_cndmask_b32 {v(xb + 4*i)}, 0, {v(VSTAT + 2*i)}, vcc')
    A('s_nop 1')
    mf = mfmas(0)
    fill = []
    for i in range(2):
        r = VSTAT + 2 * i + 1; c = VC + 6 * i
        fill += [f'v_mul_f32 {v(c+4)}, {v(r)}, {v(r)}', f'v_mul_f32 {v(c)}, {fhex(GC1)}, {v(r)}', f'v_mul_f32 {v(c+2)}, {v(c+4)}, {v(r)}',
                 f'v_rcp_f32 {v(c+4)}, {v(c+4)}', f'v_mul_f32 {v(c+2)}, {fhex(GC2)}, {v(c+2)}']
    fill += f'''s_lshl_b32 s28, s17, 3
          s_lshr_b32 s29, s19, 1
          s_lshl_b32 s29, s29, 2
          s_add_u32 s28, s28, s29
          s_mul_i32 s28, s28, {layout.HS}
          s_lshl_b32 s29, s18, 2
          s_and_b32 s30, s19, 1
          s_lshl_b32 s30, s30, 1
          s_add_u32 s29, s29, s30
          s_lshl_b32 s29, s29, 10
          s_add_u32 s28, s28, s29
          s_add_u32 s62, s28, {WS_H}
          s_add_u32 s63, s62, {2*layout.HS}'''.split('\n')
    A.extend(interleave(mf, fill))

def gelu_tile(b, T, out, i):
    L = []
    P = lambda r: v(r, 2)
    bc = 'op_sel_hi:[1,0,0]'
    VC1, VC2, VIR = VC + 6*i, VC + 6*i + 2, VC + 6*i + 4
    for q in range(4): L.append(f'v_pk_mul_f32 {P(T+2*q)}, {P(b+2*q)}, {P(b+2*q)}')
    for q in range(4): L.append(f'v_pk_fma_f32 {P(T+2*q)}, {P(T+2*q)}, {P(VC2)}, {P(VC1)} {bc}')
    for q in range(4): L.append(f'v_pk_mul_f32 {P(T+2*q)}, {P(T+2*q)}, {P(b+2*q)}')
    for q in range(8): L.append(f'v_exp_f32 {v(T+q)}, {v(T+q)}')
    for q in range(4): L.append(f'v_pk_mul_f32 {P(T+8+2*q)}, {P(b+2*q)}, {P(b+8+2*q)}')
    for q in range(4): L.append(f'v_pk_fma_f32 {P(T+2*q)}, {P(T+2*q)}, {P(VIR)}, {P(VIR)} {bc}')
    for q in range(8): L.append(f'v_rcp_f32 {v(T+q)}, {v(T+q)}')
    L.append('s_nop 0')
    for q in range(4): L.append(f'v_pk_mul_f32 {P(T+2*q)}, {P(T+2*q)}, {P(T+8+2*q)}')
    for q in range(4): L.append(f'v_cvt_pk_bf16_f32 {v(out+q)}, {v(T+2*q)}, {v(T+2*q+1)}')
    return L

def epilogue(A, sc='', hook=None):
    n = 0
    for t in range(4):
        for i in range(2):
            out = 96 + 4 * (n % 4); n += 1
            A.extend(gelu_tile(acc(i, t), 32, out, i))
            A(f'buffer_store_dwordx4 {v(out, 4)}, {v(VST)}, {s(S_WS, 4)}, {s(62 + i)} offen offset:{(t >> 1) * 1024 + (t & 1) * 512}{sc}')
            if hook: hook(n)
```

```python
import numpy as np
S, D, F = 2048, 640, 1536
WS_H   = 0
WS_XN  = 8 << 20
WS_Y   = 12 << 20
WS_WT  = 16 << 20
WS_WD  = 20 << 20
WS_U   = 24 << 20
WS_ST  = 28 << 20
WS_DBG = 32 << 20
WS_SIZE = 268435456
YS = 8192 + 128
HS = 49152 + 1024
US = 4096 + 128

def P_to_s(P):
    P = np.asarray(P)
    b = P >> 6; c = (P >> 5) & 1; u = (P >> 4) & 1; m = P & 15
    s1 = 16 * c + 8 * ((m >> 2) & 1) + 4 * (m >> 3) + (m & 3)
    return 64 * s1 + 2 * b + u

def h_slot_f(p, g, e):
    return 32 * p + 16 * (g >> 1) + 8 * (e >> 2) + 4 * (g & 1) + (e & 3)

def unpack_h(raw):
    raw = raw.reshape(128, 48, 4, 16, 8)
    h = np.zeros((S, F), np.uint16)
    RG, p, g, m, e = np.meshgrid(np.arange(128), np.arange(48), np.arange(4), np.arange(16), np.arange(8), indexing='ij')
    h[P_to_s(16 * RG + m), h_slot_f(p, g, e)] = raw
    return h

def bf16_to_f32(u):
    return (u.astype(np.uint32) << 16).view(np.float32)
def f32_to_bf16(x):
    u = np.ascontiguousarray(x, np.float32).view(np.uint32)
    return ((u + 0x7FFF + ((u >> 16) & 1)) >> 16).astype(np.uint16)

def colmap(t, i):
    t = np.asarray(t); i = np.asarray(i)
    return np.where(t < 4, 32 * (t >> 1) + 8 * (i >> 2) + 4 * (t & 1) + (i & 3), 64 + i)

def pack_h(h):
    RG, p, g, m, e = np.meshgrid(np.arange(128), np.arange(48), np.arange(4), np.arange(16), np.arange(8), indexing='ij')
    return np.ascontiguousarray(h[P_to_s(16 * RG + m), h_slot_f(p, g, e)])

def pack_wd(wd):
    cb, p, t, g, i, e = np.meshgrid(np.arange(8), np.arange(48), np.arange(5), np.arange(4), np.arange(16), np.arange(8), indexing='ij')
    return np.ascontiguousarray(wd[h_slot_f(p, g, e), 80 * cb + colmap(t, i)])

def u_slot(k, part):
    k = np.asarray(k)
    return 32 * (10 * part + k % 10) + k // 10

def pack_u(Ur, Ui):
    U = np.zeros((640, 2048), np.uint16)
    sP = P_to_s(np.arange(2048))
    k = np.arange(320)
    U[u_slot(k, 0)] = Ur[sP].T
    U[u_slot(k, 1)] = Ui[sP].T
    return U
def unpack_u(U):
    U = U.reshape(640, 2048)
    sP = P_to_s(np.arange(2048)); k = np.arange(320)
    Ur = np.zeros((2048, 320), np.uint16); Ui = np.zeros((2048, 320), np.uint16)
    Ur[sP] = U[u_slot(k, 0)].T; Ui[sP] = U[u_slot(k, 1)].T
    return Ur, Ui

def drow(r, h):
    return 8 * (r >> 2) + 4 * h + (r & 3)

def pack_y(Yr, Yi):
    k, s2, ks, h, e = np.meshgrid(np.arange(320), np.arange(64), np.arange(2), np.arange(2), np.arange(8), indexing='ij')
    srow = 64 * drow(8 * ks + e, h) + s2
    return np.ascontiguousarray(np.stack([Yr[srow, k], Yi[srow, k]], axis=2))
def unpack_y(raw):
    raw = raw.reshape(320, 64, 2, 2, 2, 8)
    k, s2, ks, h, e = np.meshgrid(np.arange(320), np.arange(64), np.arange(2), np.arange(2), np.arange(8), indexing='ij')
    srow = 64 * drow(8 * ks + e, h) + s2
    Yr = np.zeros((2048, 320), np.uint16); Yi = np.zeros((2048, 320), np.uint16)
    Yr[srow, k] = raw[:, :, 0]; Yi[srow, k] = raw[:, :, 1]
    return Yr, Yi

def pack_wt(wr, wi):
    wr = wr.copy(); wi = wi.copy()
    for c in (0, 320):
        wr[:, c] = f32_to_bf16(bf16_to_f32(wr[:, c]) * 0.5); wi[:, c] = f32_to_bf16(bf16_to_f32(wi[:, c]) * 0.5)
    k, q, h, j1, jj = np.meshgrid(np.arange(321), np.arange(8), np.arange(2), np.arange(32), np.arange(4), indexing='ij')
    j = j1 + 32 * (8 * q + 4 * h + jj)
    return np.ascontiguousarray(wr[j, k].astype(np.uint32) | (wi[j, k].astype(np.uint32) << 16))

def sfft_tables():
    out = []
    h, a, e = np.meshgrid(np.arange(2), np.arange(32), np.arange(8), indexing='ij')
    def frags(n, aa, ks):
        b = 16 * ks + 8 * (e >> 2) + 4 * h + (e & 3)
        ang = 2 * np.pi * ((aa * b) % n) / n
        c = np.cos(ang); sn = np.sin(ang)
        c[np.abs(c) < 1e-12] = 0; sn[np.abs(sn) < 1e-12] = 0
        return [f32_to_bf16(c.astype(np.float32)), f32_to_bf16(sn.astype(np.float32)), f32_to_bf16((-sn).astype(np.float32) + 0.0)]
    for ks in range(2): out += frags(32, a, ks)
    for ta in range(2):
        for ks in range(4): out += frags(64, a + 32 * ta, ks)
    h, a, jj = np.meshgrid(np.arange(2), np.arange(32), np.arange(4), indexing='ij')
    for which in range(2):
        for t in range(2):
            for rg in range(4):
                row = 8 * rg + 4 * h + jj
                n = (32 * t + row) * a if which == 0 else (32 * t + a) * row
                ang = 2 * np.pi * n / 2048
                sc = 1.0 if which == 0 else 1.0 / 2048 / 320
                out += [(np.cos(ang) * sc).astype(np.float32), (np.sin(ang) * sc).astype(np.float32)]
    return b''.join(np.ascontiguousarray(x).tobytes() for x in out)
TAB_F32, TAB_F64, TAB_TW1, TAB_TW2, TAB_SIZE = 0, 6144, 30720, 47104, 63488

def data_asm(label, data):
    q = np.frombuffer(data, np.uint64)
    lines = [f'.p2align 8\n.type {label},@object\n{label}:']
    for i in range(0, len(q), 8):
        lines.append('.quad ' + ','.join(('0x%x' % x) if x else '0' for x in q[i:i+8]))
    lines.append(f'.size {label}, {len(data)}')
    return '\n'.join(lines) + '\n'
WS_CS = WS_ST + 65536

def strided(raw, n, size, stride):
    return np.stack([raw[i * stride:i * stride + size] for i in range(n)])
def put_strided(img, off, arr, n, stride):
    b = np.ascontiguousarray(arr).view(np.uint8).reshape(n, -1)
    for i in range(n): img[off + i * stride:off + i * stride + b.shape[1]] = b[i]
WS_FL = WS_ST + 131072
FL_U = WS_FL
FL_R = WS_FL + 16384
FL_C = FL_R + 1024
FL_A = FL_C + 1024
FL_H = FL_A + 1024
FL_P = FL_H + 4096
FL_LINES = 128 + 8 + 8 + 8 + 32 + 256
WS_PB = 20 << 20
```

```python
from asmlib import *
from layout import *
import common, math, layout
LOG2E = 1.4426950408889634
MF32 = 'v_mfma_f32_32x32x16_bf16'
MF16 = 'v_mfma_f32_16x16x32_bf16'
SLOTS = [69376, 89856, 110336, 48896, 0, 20480]
L_F = [130816 + 8192 * i for i in range(4)]
L_FLG = 163584
L_BIG = SLOTS[0]
L_GATE = SLOTS[3]
S_X, S_O, S_WS = 4, 8, 12

def srds(A):
    A(f'''s_mov_b32 s4, s40\ns_mov_b32 s5, s41\ns_mov_b32 s6, {S*D*2}\ns_mov_b32 s7, 0x20000
          s_mov_b32 s8, s54\ns_mov_b32 s9, s55\ns_mov_b32 s10, {S*D*2}\ns_mov_b32 s11, 0x20000
          s_mov_b32 s12, s58\ns_mov_b32 s13, s59\ns_mov_b32 s14, {WS_SIZE}\ns_mov_b32 s15, 0x20000''')

ACC0, ACC1 = 8, 28; AF = (48, 68); HB = 96; NHF = 40; NH0 = 12
VH, VR1, VR2, VFO, VFA, VH3, VFT = 2, 3, 4, 5, 6, 7, 88
VWD = 8
S_H0, S_H1, S_WD, S_LW, S_D = 20, 21, 25, 23, 36
NGR = 6
SIGSTEP, POLLSTEP = 34, 44
S_HG, VH0, VH1, VH4 = 42, 92, 93, 94
HRATE = 2

def rot(A, dst):
    A(f'''s_lshr_b32 {dst}, s17, 1
          s_and_b32 {dst}, {dst}, 3
          s_mul_i32 {dst}, {dst}, {ROTC}
          s_add_u32 {dst}, {dst}, s18
          s_mul_i32 {dst}, {dst}, {ROT}
          s_mul_i32 s28, {dst}, 43
          s_lshr_b32 s28, s28, 8
          s_mul_i32 s28, s28, 6
          s_sub_u32 {dst}, {dst}, s28''')
def grp(A, dst, r, g, scale, base):
    A(f's_add_u32 {dst}, {r}, {g}\ns_cmp_ge_u32 {dst}, 6\ns_cselect_b32 s28, 6, 0\ns_sub_u32 {dst}, {dst}, s28\ns_mul_i32 {dst}, {dst}, {scale}\ns_add_u32 {dst}, {dst}, {base}')
ROT, ROTC = 1, 1

def wd_setup(A, share, VWD=VWD, S_LW=S_LW):
    A(f'''s_mov_b32 s36, s52\ns_mov_b32 s37, s53\ns_mov_b32 s38, {F*D*2}\ns_mov_b32 s39, 0x20000
          s_mul_i32 {s(S_WD)}, s18, 160
          s_mul_i32 s28, s3, {768*1280}
          s_add_u32 {s(S_WD)}, {s(S_WD)}, s28
          s_lshl_b32 {s(S_LW)}, {share}, 10
          s_lshl_b32 s28, {share}, 6
          v_add_u32 v16, s28, v0
          s_movk_i32 s29, 1120''')
    rot(A, 's63')
    for i in range(5):
        A(f'''v_add_u32 v17, {256*i}, v16
              v_mul_u32_u24 v18, 6554, v17
              v_lshrrev_b32 v18, 16, v18
              v_lshlrev_b32 v17, 4, v17
              v_mad_u32_u24 {v(VWD+i)}, v18, s29, v17''')

def wd_fill(A, groups, VWD=VWD, S_LW=S_LW):
    for g in groups:
        grp(A, 's24', 's63', g, 128*1280, s(S_WD))
        for i in range(5):
            A(f's_add_u32 m0, {s(S_LW)}, {SLOTS[g] + 4096*i}\ns_nop 0\nbuffer_load_dwordx4 {v(VWD + i)}, {s(S_D,4)}, s24 offen lds')

def g_setup(A):
    A(f'''v_lshlrev_b32 {v(VH)}, 4, v0
          s_lshl_b32 s28, s17, 2
          s_add_u32 s28, s28, s19
          s_mul_i32 s29, s3, {24*1024}
          s_add_u32 s29, s29, {WS_H}
          s_mul_i32 {s(S_H0)}, s28, {layout.HS}
          s_add_u32 {s(S_H0)}, {s(S_H0)}, s29
          s_xor_b32 s28, s28, 4
          s_mul_i32 {s(S_H1)}, s28, {layout.HS}
          s_add_u32 {s(S_H1)}, {s(S_H1)}, s29
          s_lshl_b32 s28, s19, 2
          s_add_u32 s28, s28, {L_FLG}
          v_mov_b32 {v(VFO)}, s28
          v_lshrrev_b32 {v(VFT)}, 5, v0
          v_lshlrev_b32 {v(VFT)}, 4, {v(VFT)}
          v_bfe_u32 {v(VFT+1)}, v0, 4, 1
          v_lshl_add_u32 {v(VFT)}, {v(VFT+1)}, 2, {v(VFT)}
          v_bfe_u32 {v(VFT+1)}, v0, 2, 2
          v_add_u32 {v(VFT)}, {v(VFT)}, {v(VFT+1)}
          v_mul_u32_u24 {v(VFT)}, 160, {v(VFT)}
          v_and_b32 {v(VFT+1)}, 3, v0
          v_lshl_add_u32 {v(VR1)}, {v(VFT+1)}, 3, {v(VFT)}
          v_add_u32 {v(VR2)}, 0x10000, {v(VR1)}''')
    rot(A, 's22')
    A(f's_min_u32 s29, {s(S_H0)}, {s(S_H1)}')
    for g in range(6): grp(A, s(S_HG + g), 's22', g, 4096, 's29')
    A(f's_sub_u32 {s(S_H1)}, {s(S_H1)}, s29\nv_add_u32 {v(VH1)}, {s(S_H1)}, {v(VH)}\ns_sub_u32 {s(S_H0)}, {s(S_H0)}, s29\nv_add_u32 {v(VH0)}, {s(S_H0)}, {v(VH)}')

def h_load(n, sc=''):
    ks, st = n % 24, 1 - n // 24
    return [f'buffer_load_dwordx4 {v(HB + 4*(n % NHF), 4)}, {v(VH1 if st else VH0)}, {s(S_WS,4)}, {s(S_HG + (ks >> 2))} offen offset:{1024*(ks & 3)}{sc}']
def a_reads(step, buf):
    out = []
    for t in range(5):
        for q in range(2):
            off = SLOTS[step >> 2] + 5120 * (step & 3) + 1280 * q + 32 * t
            out.append(f'ds_read_b64_tr_b16 {v(AF[buf] + 4*t + 2*q, 2)}, {v(VR1 if off < 65536 else VR2)} offset:{off & 65535}')
    return out

def g_main(A, name, slow, sc='', so='', stamp=lambda i: None):
    vm = VM(); lg = VM()
    def ds(line, tag): A(line); lg.issue(tag)
    nh = 0
    def hl():
        nonlocal nh
        A.extend(h_load(nh, sc)); vm.issue(nh); nh += 1
    for _ in range(NH0): hl()
    for n, r in enumerate(a_reads(0, 0)): ds(r, (0, n // 2))
    A(f'''s_xor_b32 s28, s2, 1
          s_lshl_b32 s29, s28, 2
          s_add_u32 s29, s29, s19
          s_mul_i32 s29, s29, 2560
          s_add_u32 s24, s29, {WS_PB}
          s_add_u32 s25, s24, 4096
          s_lshl_b32 s28, s28, 7
          s_lshl_b32 s31, s19, 2
          s_add_u32 s28, s28, s31
          s_add_u32 s34, s28, {FL_P}
          s_lshl_b32 s29, s2, 2
          s_add_u32 s29, s29, s19
          s_mul_i32 s29, s29, 2560
          s_add_u32 s29, s29, {WS_PB}
          s_add_u32 s30, s29, 4096
          s_lshl_b32 s35, s2, 7
          s_add_u32 s35, s35, s31
          s_add_u32 s35, s35, {FL_P}
          s_mul_i32 s31, s19, 5120
          s_add_u32 s31, s31, {L_GATE}
          v_add_u32 {v(VH3)}, s31, {v(VH)}
          v_mov_b32 {v(VFT+1)}, 0
          v_lshlrev_b32 {v(VH4)}, 3, v0
          s_mov_b32 s26, 1''')
    T = ACC1
    for step in range(48):
        buf = step & 1
        rd = a_reads((step + 1) % 24, buf ^ 1) if step < 47 else []
        if step % 2 == 0: A(f's_waitcnt vmcnt({vm.count(step + 1)})')
        if step == 0 and stamp(3): lg.q = []
        if step == 24 and stamp(4): lg.q = []
        k = 0
        for t in range(5):
            if t in (0, 2, 4): A(f's_waitcnt lgkmcnt({lg.count((step, min(t + 1, 4)))})')
            d = (ACC1 if step < 24 else ACC0) + 4 * t
            A(f'{MF16} {v(d, 4)}, {v(AF[buf] + 4*t, 4)}, {v(HB + 4*(step % NHF), 4)}, {"0" if step % 24 == 0 else v(d, 4)}')
            for r in rd[2*t:2*t + 2]: ds(r, (step + 1, t))
            if t < HRATE and nh < 48 and nh < step + NHF: hl()
            if step == 25:
                for q in range(2): A(f'v_cvt_pk_bf16_f32 {v(ACC1 + 2*t + q)}, {v(ACC1 + 4*t + 2*q)}, {v(ACC1 + 4*t + 2*q + 1)}')
            if step == 26 and t < 3:
                A(f'buffer_store_dwordx4 {v(ACC1 + 4*t, 4)}, {v(VH)}, {s(S_WS,4)}, s24 offen offset:{1024*t}{so}' if t < 2 else
                  f'buffer_store_dwordx2 {v(ACC1 + 8, 2)}, {v(VH4)}, {s(S_WS,4)}, s24 offen offset:2048{so}'); vm.issue('p')
            if t == 4 and step == 35:
                A(f'v_mov_b32 {v(VFT)}, 1'); ds(f'ds_write_b32 {v(VFO)}, {v(VFT)}', 'w')
            if t == 0 and step == SIGSTEP:
                A(f's_waitcnt vmcnt({vm.count("p")})\ns_atomic_add s26, s[58:59], s34\ns_waitcnt lgkmcnt(0)'); lg.q = []
            if t == 0 and step == POLLSTEP:
                A(f'buffer_load_dword {v(VFT+2)}, {v(VFT+1)}, {s(S_WS,4)}, s35 offen sc1'); vm.issue('q')
    assert nh == 48
    A(f'''v_mov_b32 {v(VFT+3)}, 2
          ds_write_b32 {v(VFO)}, {v(VFT+3)}
          s_waitcnt vmcnt(0)
          v_cmp_eq_u32 vcc, 0, {v(VFT+2)}
          s_cbranch_vccnz {name}_pp
          {name}_pp_back:''')
    slow(f'{name}_pp:\nv_mov_b32 {v(VFT)}, 1')
    common.poll_lines(slow, f'{name}_pp2', s(S_WS, 4), 's35', VFT + 1, VFT, VFT + 2, 1)
    slow(f's_branch {name}_pp_back')
    stamp(5)
    PK = AF[0]
    for t in range(2): A(f'buffer_load_dwordx4 {v(PK + 4*t, 4)}, {v(VH)}, {s(S_WS,4)}, s29 offen offset:{1024*t}{sc}')
    A(f'buffer_load_dwordx2 {v(PK + 8, 2)}, {v(VH4)}, {s(S_WS,4)}, s29 offen offset:2048{sc}')
    common.sw_addr(A, VFA, L_FLG)
    common.sw_wait(A, f'{name}_gd', VFA, 2, VFT)
    A(f's_mov_b32 s28, {fhex(-LOG2E)}')
    for t in range(5):
        if t % 2 == 0: A(f's_waitcnt vmcnt({2 - t // 2})')
        for q in range(2): A(f'v_lshlrev_b32 {v(T + 4*t + 2*q)}, 16, {v(PK + 2*t + q)}\nv_and_b32 {v(T + 4*t + 2*q + 1)}, 0xffff0000, {v(PK + 2*t + q)}')
        for r in range(4 * t, 4 * t + 4): A(f'v_add_f32 {v(ACC0+r)}, {v(ACC0+r)}, {v(T+r)}')
        for r in range(4 * t, 4 * t + 4): A(f'v_mul_f32 {v(T+r)}, s28, {v(ACC0+r)}')
        for r in range(4 * t, 4 * t + 4): A(f'v_exp_f32 {v(T+r)}, {v(T+r)}')
    for r in range(20): A(f'v_add_f32 {v(T+r)}, 1.0, {v(T+r)}')
    for r in range(20): A(f'v_rcp_f32 {v(T+r)}, {v(T+r)}')
    for t in range(5):
        for r in range(4 * t, 4 * t + 4): A(f'v_mul_f32 {v(T+r)}, {v(T+r)}, {v(ACC0+r)}')
        A(f'ds_write_b128 {v(VH3)}, {v(T + 4*t, 4)} offset:{1024*t}')
    A(f'v_mov_b32 {v(VFT)}, 1\ns_waitcnt lgkmcnt(0)\nds_write_b32 {v(VFO)}, {v(VFT)} offset:32')

C32, F64, TW1, TW2 = 120, 144, 192, 224
WTR, DRE, DIM, OWN, OTH, TMP = 104, 72, 88, 40, 56, 24
VL, VB, VP, VFP, VFW, VST = 2, 3, 4, 5, 6, 7
S_K, S_T, S_LB = 20, 21, 22
def fr(base, part, i): return base + 8 * part + 4 * i

def f_setup(A, extra=False):
    base, sh, fl = (L_F[0] + 4096, 13, L_FLG + 104) if extra else (L_F[0], 13, L_FLG + 16)
    A(f'''s_and_b32 {s(S_T)}, s19, 1
          s_lshl_b32 {s(S_LB)}, s19, {sh}
          s_add_u32 {s(S_LB)}, {s(S_LB)}, {base}
          v_lshlrev_b32 {v(VL)}, 4, v0
          v_add_u32 {v(VB)}, {s(S_LB)}, {v(VL)}
          s_xor_b32 s28, s19, 1
          s_lshl_b32 s28, s28, {sh}
          s_add_u32 s28, s28, {base}
          v_add_u32 {v(VP)}, s28, {v(VL)}
          s_lshl_b32 s28, s19, 2
          s_add_u32 s28, s28, {fl}
          v_mov_b32 {v(VFW)}, s28
          s_and_b32 s28, s28, -8''')
    common.sw_addr(A, VFP, 's28', 2)

def sf_consts(A, vm, label, sfx=''):
    A(f'''s_getpc_b64 s[36:37]
          {label}_pc{sfx}:
          s_add_u32 s36, s36, {label}-{label}_pc{sfx}
          s_addc_u32 s37, s37, 0
          s_mov_b32 s38, {TAB_SIZE}
          s_mov_b32 s39, 0x20000''')
    def ld(reg, soff, imm, tag): A(f'buffer_load_dwordx4 {v(reg, 4)}, {v(VL)}, s[36:39], {soff} offen offset:{imm}'); vm.issue(tag)
    A('s_movk_i32 s28, 3072')
    for i in range(6): ld(C32 + 4 * i, '0' if i < 3 else 's28', 1024 * (i % 3), 'c32')
    A(f's_lshl_b32 s28, {s(S_T)}, 13\ns_add_u32 s28, s28, {TAB_TW1}\ns_add_u32 s29, s28, 4096')
    for i in range(8): ld(TW1 + 4 * i, 's28' if i < 4 else 's29', 1024 * (i & 3), 'tw1')
    for i in range(4):
        A(f's_lshl_b32 s28, {s(S_T)}, 1\ns_xor_b32 s28, s28, {i}\ns_mul_i32 s28, s28, 3072\ns_mul_i32 s29, {s(S_T)}, 12288\ns_add_u32 s28, s28, s29\ns_add_u32 s28, s28, {TAB_F64}')
        for c in range(3): ld(F64 + 12 * i + 4 * c, 's28', 1024 * c, 'f64')
    A(f's_lshl_b32 s28, {s(S_T)}, 13\ns_add_u32 s28, s28, {TAB_TW2}\ns_add_u32 s29, s28, 4096')
    for i in range(8): ld(TW2 + 4 * i, 's28' if i < 4 else 's29', 1024 * (i & 3), 'tw2')

def sf_data(A, vm, sc=''):
    A(f'''s_cmp_eq_u32 {s(S_K)}, 320
          s_cselect_b32 s28, 0, {s(S_K)}
          s_mul_i32 s28, s28, {YS}
          s_lshl_b32 s30, {s(S_T)}, 12
          s_add_u32 s28, s28, s30
          s_add_u32 s28, s28, {WS_Y}
          v_lshrrev_b32 v8, 4, v0
          v_and_b32 v9, 7, v0
          v_xor_b32 v8, v8, v9
          v_lshlrev_b32 v8, 4, v8
          v_lshrrev_b32 v9, 3, v0
          v_lshl_add_u32 v8, v9, 7, v8
          v_xor_b32 v9, 64, v8''')
    for i in range(4):
        A(f's_add_u32 m0, {s(S_LB)}, {1024*i}\ns_add_u32 s29, s28, {1024*i}\nbuffer_load_dwordx4 {"v9" if i & 1 else "v8"}, {s(S_WS,4)}, s29 offen{sc} lds'); vm.issue('y')
    A(f's_mul_i32 s28, {s(S_K)}, {YS}\ns_add_u32 s28, s28, s30\ns_add_u32 s28, s28, {WS_WT}')
    for q in range(4):
        A(f'buffer_load_dwordx4 {v(WTR + 4*q, 4)}, {v(VL)}, {s(S_WS,4)}, s28 offen offset:{1024*q}{sc}'); vm.issue('wt')

def cmul(A, rg, c, sn, conj):
    R, M, o = DRE + 4 * rg, DIM + 4 * rg, TMP
    for q in range(4): A(f'v_mul_f32 {v(o+q)}, {v(R+q)}, {v(c+q)}')
    for q in range(4): A(f'v_mul_f32 {v(o+4+q)}, {v(M+q)}, {v(c+q)}')
    for q in range(4): A(f'v_fma_f32 {v(o+q)}, -{v(M+q)}, {v(sn+q)}, {v(o+q)}' if conj else f'v_fmac_f32 {v(o+q)}, {v(M+q)}, {v(sn+q)}')
    for q in range(4): A(f'v_fmac_f32 {v(o+4+q)}, {v(R+q)}, {v(sn+q)}' if conj else f'v_fma_f32 {v(o+4+q)}, -{v(R+q)}, {v(sn+q)}, {v(o+4+q)}')
    i, d = rg >> 1, 2 * (rg & 1)
    for q in (0, 1): A(f'v_cvt_pk_bf16_f32 {v(fr(OWN, 0, i) + d + q)}, {v(o+2*q)}, {v(o+2*q+1)}')
    for q in (0, 1): A(f'v_cvt_pk_bf16_f32 {v(fr(OWN, 1, i) + d + q)}, {v(o+4+2*q)}, {v(o+4+2*q+1)}')

def cstage(src, cb, i, inv, data_is_a, first):
    C, S_, N = cb, cb + 4, cb + 8
    zr, zi = fr(src, 0, i), fr(src, 1, i)
    ops = [(DRE, C, zr, first), (DIM, C, zi, first), (DRE, N if inv else S_, zi, False), (DIM, S_ if inv else N, zr, False)]
    return [f'{MF32} {v(d, 16)}, {v(z if data_is_a else k, 4)}, {v(k if data_is_a else z, 4)}, {"0" if f else v(d, 16)}' for d, k, z, f in ops]

def exchange_stage(A, name, gen, inv):
    for q in range(4): A(f'ds_write_b128 {v(VB)}, {v(OWN + 4*q, 4)} offset:{1024*q}')
    mf = cstage(OWN, F64, 0, inv, inv, True) + cstage(OWN, F64 + 12, 1, inv, inv, False)
    A.extend(mf[:3])
    A('s_waitcnt lgkmcnt(0)')
    common.sw_arrive(A, VFW, gen, TMP)
    A.extend(mf[3:6])
    common.sw_wait(A, name, VFP, gen, TMP)
    for q in range(4): A(f'ds_read_b128 {v(OTH + 4*q, 4)}, {v(VP)} offset:{1024*q}')
    A.extend(mf[6:])
    A('s_waitcnt lgkmcnt(0)')
    common.sw_arrive(A, VFW, gen + 1, TMP)
    A.extend(cstage(OTH, F64 + 24, 0, inv, inv, False) + cstage(OTH, F64 + 36, 1, inv, inv, False))

def sf_compute(A, vm, name, sc='', stamp=lambda i: None):
    A(f'''v_and_b32 v1, 31, v0
          v_lshl_add_u32 v1, v1, 7, {s(S_LB)}
          v_bfe_u32 v12, v0, 1, 3
          v_lshrrev_b32 v13, 5, v0
          v_xor_b32 v12, v12, v13
          s_cmp_eq_u32 {s(S_K)}, 320
          s_cselect_b32 s28, 4, 0
          v_xor_b32 v13, s28, v12''')
    for ks in range(2):
        A(f'v_xor_b32 v14, {2*ks}, v13\nv_lshl_add_u32 {v(8+ks)}, v14, 4, v1')
        A(f'v_xor_b32 v14, {4 + 2*ks}, v12\nv_lshl_add_u32 {v(10+ks)}, v14, 4, v1')
    A(f'''s_cmp_eq_u32 {s(S_K)}, 320
          s_cselect_b32 s25, 0, {s(S_K)}
          s_cselect_b32 s31, {320*US}, 0
          s_mul_i32 s29, s25, 6554
          s_lshr_b32 s29, s29, 16            ; k / 10
          s_mul_i32 s30, s29, 10
          s_sub_u32 s30, s25, s30
          s_lshl_b32 s30, s30, 5
          s_add_u32 s30, s30, s29
          s_mul_i32 s30, s30, {US}
          s_add_u32 s30, s30, s31
          s_lshl_b32 s29, {s(S_T)}, 11
          s_add_u32 s30, s30, s29
          s_add_u32 s26, s30, {WS_U}
          s_add_u32 s27, s26, {320*US}
          v_bfe_u32 v1, v0, 1, 4
          v_lshlrev_b32 v1, 7, v1
          v_and_b32 v12, 1, v0
          v_lshl_add_u32 v1, v12, 5, v1
          v_lshrrev_b32 v12, 5, v0
          v_lshl_add_u32 {v(VST)}, v12, 4, v1
          s_waitcnt vmcnt({vm.count("y", "c32", "tw1")})''')
    stamp(0)
    for part in range(2):
        for ks in range(2): A(f'ds_read_b128 {v(fr(OTH, part, ks), 4)}, {v(8 + 2*part + ks)}')
    A(f's_cmp_eq_u32 s25, 0\ns_waitcnt lgkmcnt(0)\ns_cbranch_scc0 {name}_cplx')
    for r in range(8): A(f'v_mov_b32 {v(fr(OTH, 1, 0) + r)}, 0')
    A(f's_nop 1\n{name}_cplx:')
    A.extend(cstage(OTH, C32, 0, False, True, True) + cstage(OTH, C32 + 12, 1, False, True, False))
    A('s_nop 10')
    for rg in range(4): cmul(A, rg, TW1 + 8 * rg, TW1 + 8 * rg + 4, False)
    A(f's_waitcnt vmcnt({vm.count("f64")})')
    exchange_stage(A, f'{name}_x1', 1, False)
    A(f's_waitcnt vmcnt({vm.count("wt")})')
    stamp(1)
    for rg in range(4):
        b = 8 + 8 * (rg & 1)
        for jj in range(4):
            A(f'v_lshlrev_b32 {v(b + jj)}, 16, {v(WTR + 4*rg + jj)}\nv_and_b32 {v(b + 4 + jj)}, 0xffff0000, {v(WTR + 4*rg + jj)}')
        if rg == 0: A('s_nop 3')
        cmul(A, rg, b, b + 4, True)
    common.sw_wait(A, f'{name}_x2p', VFP, 2, TMP)
    exchange_stage(A, f'{name}_x2', 3, True)
    A(f's_waitcnt vmcnt({vm.count("tw2")})\ns_nop 9')
    for rg in range(4): cmul(A, rg, TW2 + 8 * rg, TW2 + 8 * rg + 4, True)
    A('s_nop 0')
    A.extend(cstage(OWN, C32, 0, True, False, True) + cstage(OWN, C32 + 12, 1, True, False, False))
    def pack_store(part):
        d = DIM if part else DRE
        for c in range(2):
            o = OTH + 8 * part + 4 * c
            for q in range(4): A(f'v_cvt_pk_bf16_f32 {v(o + q)}, {v(d + 8*c + 2*q)}, {v(d + 8*c + 2*q + 1)}')
            A(f'buffer_store_dwordx4 {v(o, 4)}, {v(VST)}, {s(S_WS,4)}, {"s27" if part else "s26"} offen offset:{64*c}{sc}')
    stamp(2)
    A('s_nop 10')
    pack_store(0)
    A(f's_cmp_eq_u32 s25, 0\ns_cbranch_scc1 {name}_noim')
    pack_store(1)
    A(f'{name}_noim:')

def u_signal(A):
    A(f'''s_and_b32 s28, {s(S_K)}, 15
          s_lshl_b32 s28, s28, 7
          s_add_u32 s28, s28, {FL_U}
          v_lshlrev_b32 v8, 11, v0
          v_mov_b32 v9, 1
          s_waitcnt vmcnt(0)
          s_mov_b64 exec, 0xff
          buffer_atomic_add v9, v8, {s(S_WS,4)}, s28 offen sc1
          s_mov_b64 exec, -1''')

TR, ACCS, UF = 152, 72, 56
XR = 40
VXO, VXL, VUR, VUD = 8, 52, 11, 12
PITCH = 336

def x_loads(A, vm):
    A(f'''s_lshr_b32 s28, s19, 1
          s_lshl_b32 s28, s28, 10
          s_lshl_b32 s29, s17, 1
          s_add_u32 s28, s28, s29
          s_and_b32 s29, s19, 1
          s_add_u32 s28, s28, s29
          s_mul_i32 s28, s28, 1280
          s_mul_i32 s29, s18, 160
          s_add_u32 s24, s28, s29
          s_mov_b32 s29, {64*1280}''')
    for p in range(3):
        A(f'''v_add_u32 v16, {64*p}, v0
              v_mul_u32_u24 v17, 6554, v16
              v_lshrrev_b32 v17, 16, v17            ; row m
              v_mul_u32_u24 v18, 10, v17
              v_sub_u32 v16, v16, v18               ; chunk
              v_mul_u32_u24 v18, {PITCH}, v17
              v_lshl_add_u32 {v(VXL+p)}, v16, 5, v18
              v_and_b32 v18, 3, v17
              v_bfe_u32 v19, v17, 2, 1
              v_lshl_add_u32 v18, v19, 3, v18
              v_bfe_u32 v19, v17, 3, 1
              v_lshl_add_u32 v18, v19, 2, v18
              v_mul_lo_u32 v18, v18, s29
              v_lshl_add_u32 {v(VXO+p)}, v16, 4, v18''')
    A(f'v_lshrrev_b32 v16, 5, v0\nv_lshl_or_b32 {v(VXO+2)}, v16, 30, {v(VXO+2)}\nv_min_u32 {v(VXL+2)}, {15*PITCH + 288}, {v(VXL+2)}')
    for p in range(3):
        A(f'buffer_load_dwordx4 {v(XR+4*p, 4)}, {v(VXO+p)}, {s(S_X,4)}, s24 offen'); vm.issue('x')

def tgen(A, mid=None):
    R = lambda t, j: 72 + 16 * t + 8 * (j & 1)
    N, K1, K10, T1 = 24, 29, 34, 56
    A0, SP = 22, 23
    F5 = range(5)
    A(f'''s_lshr_b32 s30, s19, 1              ; part
          s_mul_i32 s34, s30, 0x3e800000
          s_lshl_b32 s30, s30, 31
          s_and_b32 s29, s19, 1
          s_mul_i32 s31, s29, 5
          s_cmp_eq_u32 s29, 0
          s_cselect_b64 s[32:33], 0xffff, 0
          s_mov_b32 s35, {fhex(1.0/640)}
          s_mul_i32 s28, s18, 80
          v_lshlrev_b32 {v(SP)}, 31, v0
          v_and_b32 {v(SP)}, s30, {v(SP)}
          v_xor_b32 {v(SP)}, 0.5, {v(SP)}
          v_lshrrev_b32 {v(A0)}, 4, v0
          v_mul_u32_u24 {v(A0)}, 80, {v(A0)}
          v_add_u32 {v(A0)}, s31, {v(A0)}
          v_cvt_f32_u32 {v(A0)}, {v(A0)}
          v_and_b32 {v(T1)}, 15, v0
          v_add_u32 {v(T1)}, s28, {v(T1)}
          v_cvt_f32_u32 {v(N)}, {v(T1)}''')
    for t in range(1, 5): A(f'v_add_f32 {v(N+t)}, {fhex(16.0*t)}, {v(N)}')
    for t in F5: A(f'v_mul_f32 {v(R(t, 0))}, {v(A0)}, {v(N+t)}')
    for t in F5: A(f'v_mul_f32 {v(T1+t)}, s35, {v(R(t, 0))}')
    for t in F5: A(f'v_mul_f32 {v(K10+t)}, {fhex(1.0/64)}, {v(N+t)}')
    for t in F5: A(f'v_floor_f32 {v(T1+t)}, {v(T1+t)}')
    for t in F5: A(f'v_mul_f32 {v(K1+t)}, s35, {v(N+t)}')
    for t in F5: A(f'v_fmac_f32 {v(R(t, 0))}, {fhex(-640.0)}, {v(T1+t)}')
    for t in F5: A(f'v_fract_f32 {v(K10+t)}, {v(K10+t)}')
    for t in F5: A(f'v_mul_f32 {v(R(t, 0))}, s35, {v(R(t, 0))}')
    for t in F5: A(f'v_add_f32 {v(R(t, 0))}, s34, {v(R(t, 0))}')
    for t in F5: A(f'v_add_f32 {v(R(t, 1))}, {v(R(t, 0))}, {v(K1+t)}')
    for t in F5: A(f'v_add_f32 {v(R(t, 0)+1)}, {v(R(t, 0))}, {v(K10+t)}')
    for t in F5: A(f'v_add_f32 {v(R(t, 1)+1)}, {v(R(t, 1))}, {v(K10+t)}')
    for r in [K10 + t for t in F5] + [R(t, j) + e for t in F5 for j in (0, 1) for e in (0, 1)] + [K1 + t for t in F5]:
        A(f'v_cos_f32 {v(r)}, {v(r)}')
    for t in F5: A(f'v_add_f32 {v(K10+t)}, {v(K10+t)}, {v(K10+t)}')
    for t in F5: A(f'v_add_f32 {v(K1+t)}, {v(K1+t)}, {v(K1+t)}')
    if mid: mid()
    for e in range(2, 8):
        for t in F5:
            for j in (0, 1): A(f'v_fma_f32 {v(R(t, j)+e)}, {v(K10+t)}, {v(R(t, j)+e-1)}, -{v(R(t, j)+e-2)}')
    for t in F5: A(f'v_cndmask_b32 {v(T1+t)}, {v(R(t, 0))}, {v(SP)}, s[32:33]')
    for j in range(5):
        for t in F5:
            row = R(t, j)
            if j >= 2:
                for e in range(8): A(f'v_fma_f32 {v(row+e)}, {v(K1+t)}, {v(R(t, j-1)+e)}, -{v(row+e)}')
            for q in range(4): A(f'v_cvt_pk_bf16_f32 {v(TR + 20*t + 4*j + q)}, {v(T1+t if (j == 0 and q == 0) else row+2*q)}, {v(row+2*q+1)}')

def u_setup(A):
    A(f'''v_lshrrev_b32 v16, 3, v0
          v_mul_u32_u24 v16, {US}, v16
          v_bfe_u32 v17, v0, 1, 2
          v_bfe_u32 v18, v0, 4, 1
          v_xor_b32 v17, v17, v18
          v_and_b32 v18, 1, v0
          v_lshl_add_u32 v16, v18, 4, v16
          v_lshl_add_u32 {v(VUD)}, v17, 5, v16
          v_xor_b32 v17, 2, v17
          v_lshl_add_u32 {v(VUD+1)}, v17, 5, v16
          v_add_u32 {v(VUD+1)}, {8*US}, {v(VUD+1)}
          s_mul_i32 s26, s19, {160*US}
          s_lshl_b32 s28, s17, 7
          s_add_u32 s26, s26, s28
          s_add_u32 s26, s26, {WS_U}
          v_lshrrev_b32 v16, 4, v0             ; g
          v_bfe_u32 v17, v0, 2, 2              ; r
          v_lshl_add_u32 v18, v16, 3, v17
          v_lshlrev_b32 v18, 7, v18
          v_and_b32 v16, 1, v16
          v_lshrrev_b32 v17, 1, v17
          v_lshl_add_u32 v16, v16, 1, v17      ; f = b1 + 2 b3
          v_lshl_add_u32 v18, v16, 5, v18
          v_and_b32 v16, 3, v0
          v_lshl_add_u32 v18, v16, 3, v18
          v_add_u32 {v(VUR)}, {s(S_LB)}, v18
          v_and_b32 v16, 15, v0
          v_lshlrev_b32 v14, 7, v16
          v_cmp_eq_u32 vcc, 0, v16
          v_mov_b32 v15, 40
          s_and_b32 s27, s2, 7
          s_lshl_b32 s27, s27, 11
          s_add_u32 s27, s27, {FL_U}
          v_cndmask_b32 v15, v15, 42, vcc''')

def u_wait(A, name, sleep=6, utouch=True):
    A(f'''s_mul_i32 s30, s18, {80*US}
          s_lshl_b32 s28, s17, 7
          s_add_u32 s30, s30, s28
          s_add_u32 s30, s30, {WS_U}
          s_add_u32 s31, s30, {64*US}
          v_mul_u32_u24 v19, {US}, v0
          v_and_b32 v20, 15, v0
          v_mul_u32_u24 v20, {US}, v20''')
    touch = f'buffer_load_dword v39, v19, {s(S_WS,4)}, s30 offen\nbuffer_load_dword v39, v20, {s(S_WS,4)}, s31 offen' if utouch else ''
    A(f'''v_mov_b32 v21, {L_FLG + 48}
          s_cmp_lg_u32 s19, 0
          s_cbranch_scc1 {name}_l
          {name}:
          buffer_load_dword v16, v14, {s(S_WS,4)}, s27 offen sc1
          s_waitcnt vmcnt(0)
          v_cmp_eq_u32 vcc, v16, v15
          s_cmp_eq_u64 vcc, -1
          s_cbranch_scc1 {name}_s
          s_sleep {sleep}
          {common.AGAIN(name)}
          {name}_s:
          {touch}
          ds_write_b32 v21, v15
          s_branch {name}_ok
          {name}_l:
          ds_read_b32 v16, v21
          s_waitcnt lgkmcnt(0)
          v_readfirstlane_b32 s28, v16
          s_cmp_lg_u32 s28, 0
          s_cbranch_scc1 {name}_ok
          s_sleep 1
          {common.AGAIN(name + '_l')}
          {name}_ok:''')

def idft(A, name, sc=''):
    vm = VM()
    A(f's_mul_i32 s25, s19, 15360\ns_add_u32 s25, s25, {L_BIG}')
    def dma(jj):
        for i in range(4):
            base = (s(S_LB), 4096 * jj) if jj < 2 else ('s25', 4096 * (jj - 2))
            A(f's_add_u32 m0, {base[0]}, {base[1] + 1024*i}\ns_add_u32 s29, s26, {(32*jj + 16*(i >> 1)) * US}\nbuffer_load_dwordx4 {v(VUD + (i & 1))}, {s(S_WS,4)}, s29 offen{sc} lds')
            vm.issue(jj)
    dma(0); dma(1)
    common.sw_addr(A, 21, L_FLG)
    common.sw_wait(A, f'{name}_big', 21, 1, TMP, sleep=1)
    dma(2); dma(3); dma(4)
    A(f's_sub_u32 s28, s25, {s(S_LB)}')
    for rg in range(1, 4): A(f'v_xor_b32 {v(15 + rg)}, {32*rg}, {v(VUR)}')
    def rd(jj, rg):
        b = UF + 4 * (rg & 1) + 8 * (rg >> 1)
        return [f'ds_read_b64_tr_b16 {v(UF + 4*rg + 2*q, 2)}, {v(VUR if rg == 0 else 15 + rg)} offset:{4096*(jj if jj < 2 else jj - 2) + 512*q}' for q in range(2)]
    A(f's_waitcnt vmcnt({vm.count(0)})')
    for rg in range(4): A.extend(rd(0, rg))
    for jj in range(5):
        for rg in range(4):
            A(f's_waitcnt lgkmcnt({6 if jj < 4 else 6 - 2*rg})')
            for t in range(5):
                d = ACCS + 20 * rg + 4 * t
                A(f'{MF16} {v(d, 4)}, {v(TR + 20*t + 4*jj, 4)}, {v(UF + 4*rg, 4)}, {"0" if jj == 0 else v(d, 4)}')
                if t == 3 and rg == 0 and jj < 4:
                    A(f's_waitcnt vmcnt({vm.count(jj + 1)})')
                    if jj == 1:
                        for r in (VUR, 16, 17, 18): A(f'v_add_u32 {v(r)}, s28, {v(r)}')
            if jj < 4: A.extend(rd(jj + 1, rg))

def reduce_final(A, name):
    SUM, RD, XF, GT = 152, 172, 24, 232
    VW, VR = 16, 17
    A(f'v_add_u32 {v(VW)}, s25, {v(VL)}')
    for d in range(1, 4):
        A(f's_sub_u32 s28, s19, {d}\ns_and_b32 s28, s28, 3\ns_mul_i32 s28, s28, 15360\ns_add_u32 s28, s28, {L_BIG + 5120*(d-1)}\nv_add_u32 {v(VR + d)}, s28, {v(VL)}')
    for f in range(4):
        if f < 3: A(f's_cmp_lg_u32 s19, {f}\ns_cbranch_scc1 {name}_w{f+1}')
        for d in sorted(range(1, 4), key=lambda d: (f + d) & 3):
            for t in range(5):
                A(f'ds_write_b128 {v(VW)}, {v(ACCS + 20*((f + d) & 3) + 4*t, 4)} offset:{1024*(5*(d-1) + t)}')
        for r in range(20): A(f'v_mov_b32 {v(SUM + r)}, {v(ACCS + 20*f + r)}')
        if f < 3: A(f's_branch {name}_wd\n{name}_w{f+1}:')
    A(f'{name}_wd:')
    A(f's_mul_i32 s28, s19, 5120\ns_add_u32 s28, s28, {L_GATE}\nv_add_u32 v22, s28, {v(VL)}\nv_add_u32 v23, 16, {v(VFW)}')
    common.sw_addr(A, 21, L_FLG + 16)
    A('s_waitcnt lgkmcnt(0)')
    common.sw_arrive(A, VFW, 5, 12)
    for r in range(12): A(f'v_lshlrev_b32 {v(72 + 2*r)}, 16, {v(XR + r)}\nv_and_b32 {v(72 + 2*r + 1)}, 0xffff0000, {v(XR + r)}')
    A(f'''v_and_b32 v56, 15, v0
          v_mul_u32_u24 v56, {PITCH}, v56
          v_lshrrev_b32 v57, 4, v0
          v_lshl_add_u32 v56, v57, 4, v56
          v_add_u32 v56, {s(S_LB)}, v56''')
    for p in range(3): A(f'v_add_u32 {v(VXL+p)}, {s(S_LB)}, {v(VXL+p)}')
    common.sw_wait(A, f'{name}_r1', 21, 5, 12)
    for d in range(1, 4):
        for t in range(5): A(f'ds_read_b128 {v(RD + 20*(d-1) + 4*t, 4)}, {v(VR + d)} offset:{1024*t}')
    for d in range(3):
        A(f's_waitcnt lgkmcnt({10 - 5*d})')
        for r in range(20): A(f'v_add_f32 {v(SUM + r)}, {v(SUM + r)}, {v(RD + 20*d + r)}')
    A(f'''{name}_gw:
          ds_read_b32 v12, v23
          s_waitcnt lgkmcnt(0)
          v_readfirstlane_b32 s28, v12
          s_cmp_lg_u32 s28, 0
          s_cbranch_scc1 {name}_gwo
          {common.AGAIN(name + '_gw')}
          {name}_gwo:''')
    for t in range(5): A(f'ds_read_b128 {v(GT + 4*t, 4)}, v22 offset:{1024*t}')
    for t in range(5):
        A(f's_waitcnt lgkmcnt(4)')
        for r in range(4 * t, 4 * t + 4): A(f'v_mul_f32 {v(SUM + r)}, {v(SUM + r)}, {v(GT + r)}')
        A(f'ds_write_b128 v56, {v(SUM + 4*t, 4)} offset:{64*t}')
    for p in range(3):
        for q in range(2): A(f'ds_read_b128 {v(RD + 8*p + 4*q, 4)}, {v(VXL+p)} offset:{16*q}')
    for p in range(3):
        A(f's_waitcnt lgkmcnt({4 - 2*p})')
        for r in range(8 * p, 8 * p + 8): A(f'v_add_f32 {v(72 + r)}, {v(72 + r)}, {v(RD + r)}')
        for r in range(4 * p, 4 * p + 4): A(f'v_cvt_pk_bf16_f32 {v(XR + r)}, {v(72 + 2*r)}, {v(72 + 2*r + 1)}')
        A(f'buffer_store_dwordx4 {v(XR+4*p, 4)}, {v(VXO+p)}, {s(S_O,4)}, s24 offen')
```

```python
import sys
sys.path.insert(0, 'dev')
from asmlib import *
from layout import *
import common, f1, g1, p2, layout
HEADER = open('header.txt').read().split('; Override launch')[0]
NAME = 'recurrent_scan__spectral_gfnet__glu_gated_geglu__prompt_kernel'
SO, SI = ' sc0 sc1', ''
WS = 's[12:15]'
PRE = {1: 2, 2: 2, 3: 2, 4: 2, 5: 2, 6: 2, 9: 18}

def ws_srd(A):
    A(f's_mov_b32 s12, s58\ns_mov_b32 s13, s59\ns_mov_b32 s14, {WS_SIZE}\ns_mov_b32 s15, 0x20000')
def p2_ids(A):
    A('''s_and_b32 s28, s2, 7
         s_lshr_b32 s29, s2, 3
         s_and_b32 s18, s29, 7
         s_lshr_b32 s29, s29, 3
         s_and_b32 s3, s28, 1
         s_lshr_b32 s28, s28, 1
         s_lshl_b32 s28, s28, 2
         s_add_u32 s17, s28, s29
         s_lshl_b32 s17, s17, 1
         s_add_u32 s17, s17, s3
         s_and_b32 s19, s16, 3''')
HTOUCH = True
def poll_h(A, name):
    A(f's_lshl_b32 s61, s17, 7\ns_add_u32 s61, s61, {FL_H}\nv_mov_b32 v16, 0\nv_mov_b32 v18, 24')
    if HTOUCH:
        A(f'''s_lshr_b32 s28, s17, 1
              s_lshl_b32 s28, s28, 3
              s_add_u32 s28, s28, s18
              s_mul_i32 s30, s28, {layout.HS}
              s_mul_i32 s28, s3, {24*1024}
              s_add_u32 s30, s30, s28
              s_add_u32 s30, s30, {WS_H}
              v_lshlrev_b32 v19, 7, v0''')
    common.poll_lines(A, name, WS, 's61', 16, 18, 17, 2)
    if HTOUCH:
        for i in range(3): A(f'buffer_load_dword v39, v19, {WS}, s30 offen\ns_add_u32 s30, s30, 8192')
    common.lds_set(A, p2.L_FLG + 52, 16, 17)
def replica(A, dst, line):
    A(f's_and_b32 {dst}, s2, 7\ns_lshl_b32 {dst}, {dst}, 10\ns_add_u32 {dst}, {dst}, {FL_R + 128*line}')

def kernel(prof=False, wdsteps=(6, 7), touch=True, exp='', hrate=2, nh0=10, rot=0, utouch=True, sig=34, pol=44, htouch=False, hs=50176, sfprio=3, ffill=3):
    layout.HS = hs
    global HTOUCH; HTOUCH = htouch
    p2.SIGSTEP, p2.POLLSTEP = sig, pol
    p2.ROT = rot
    p2.HRATE = hrate; p2.NH0 = nh0
    A = Asm()
    st = lambda i: common.stamp(A, i, prof)
    def stw(i):
        st(i)
        if prof == True: A('s_waitcnt lgkmcnt(0)')
        return prof == True
    def fin():
        if prof: A('s_waitcnt vmcnt(0)')
        st(14); common.stamp_rt(A, 15, prof); common.stamp_flush(A, prof, 0)
        A('s_endpgm')
    common.stamp_init(A, prof)
    common.stamp_rt(A, 0, prof); st(1)
    common.entry(A)
    A(f'''s_cmp_ge_u32 s2, 256
         s_cbranch_scc1 k_done
         v_lshlrev_b32 v1, 2, v0
         v_add_u32 v1, {p2.L_FLG}, v1
         v_mov_b32 v2, 0
         ds_write_b32 v1, v2
         s_cmp_lt_u32 s2, 64
         s_cbranch_scc1 k_f
         s_sub_u32 s34, s2, 64
         s_and_b32 s28, s2, 7
         s_lshr_b32 s29, s34, 3
         s_mul_i32 s30, s29, 43
         s_lshr_b32 s30, s30, 7
         s_mul_i32 s31, s30, 3
         s_sub_u32 s31, s29, s31
         s_lshr_b32 s17, s28, 2
         s_lshl_b32 s17, s17, 3
         s_add_u32 s17, s17, s30
         s_and_b32 s18, s28, 3
         s_mul_i32 s18, s18, 3
         s_add_u32 s18, s18, s31
         s_and_b32 s19, s16, 3
         s_cmp_lt_u32 s16, 4
         s_cbranch_scc1 k_gc''')
    A.block('k_gl')
    g1.loader_addr(A)
    A('s_waitcnt lgkmcnt(0)'); ws_srd(A); st(2)
    def wait_aux(A):
        A('s_waitcnt vmcnt(0)'); st(4)
        A('s_cmp_lg_u32 s19, 0\ns_cbranch_scc1 k_aux_ok')
        common.wait_cleared(A, 'k_clr1', 41, 42)
        A(f's_and_b32 s29, s2, 7\ns_lshl_b32 s29, s29, 7\ns_add_u32 s29, s29, {FL_A}\nv_mov_b32 v43, 64')
        common.poll_lines(A, 'k_aux', WS, 's29', 41, 43, 42, 4)
    g1.loader(A, 'k', wait_aux=wait_aux, wdsteps=wdsteps); st(3)
    A('s_branch k_p2f')
    A.block('k_gc')
    common.code_prefetch(A, 'k_pf1', NAME, 'k_end-' + NAME + '-4', 20)
    g1.compute_setup(A)
    A('s_waitcnt lgkmcnt(0)'); ws_srd(A)
    A(f'''s_cmp_lg_u32 s2, 64
          s_cbranch_scc1 k_noclr
          s_cmp_lg_u32 s16, 0
          s_cbranch_scc1 k_noclr
          v_lshlrev_b32 v30, 7, v0
          v_mov_b32 v31, 0
          v_mov_b32 v32, 0\nv_mov_b32 v33, 0\nv_mov_b32 v34, 0\nv_mov_b32 v35, 0
          s_mov_b32 s28, {WS_FL}''')
    for i in range(7): A(f'buffer_store_dwordx4 v[32:35], v30, {WS}, s28 offen{SO}\ns_add_u32 s28, s28, 8192')
    A(f'''v_mov_b32 v30, 1
          s_waitcnt vmcnt(0)
          global_store_dword v31, v30, s[56:57] offset:128{SO}
          k_noclr:''')
    st(2)
    A('s_setprio 2')
    g1.mainloop(A, 'g1', sc=SI, stamp=lambda: st(3)); st(4)
    g1.ext_apply(A)
    A(f's_lshl_b32 s60, s17, 1\ns_cmp_ge_u32 s18, 6\ns_addc_u32 s60, s60, 0\ns_lshl_b32 s60, s60, 7\ns_add_u32 s60, s60, {FL_H}')
    p2_ids(A); p2.g_setup(A)
    g1.epilogue(A, sc=SO); st(5)
    A(f'''v_mov_b32 v19, 1
          ds_write_b32 {v(p2.VFO)}, v19 offset:64
          s_mov_b32 s28, 1
          s_waitcnt vmcnt(0)
          s_atomic_add s28, s[58:59], s60'''); st(6)
    A('s_branch k_p2g')
    A.block('k_f')
    vm = VM()
    A('''s_and_b32 s28, s2, 7
         s_lshl_b32 s17, s28, 3
         s_lshr_b32 s29, s2, 3
         s_add_u32 s17, s17, s29''')
    A('s_cmp_ge_u32 s16, 4\ns_cbranch_scc1 k_fs')
    f1.issue_addr(A)
    A('s_waitcnt lgkmcnt(0)')
    f1.issue_x(A, vm); ws_srd(A); A('s_barrier'); stw(2)
    def landed():
        common.lds_set(A, f1.L_FL + 36, 10, 11); A('s_waitcnt lgkmcnt(0)')
    f1.layernorm(A, vm, landed)
    A(f's_lshl_b32 s28, s16, 2\ns_add_u32 s28, s28, {p2.L_FLG + 80}\nv_mov_b32 v8, s28\ns_mov_b32 s36, s16\ns_waitcnt lgkmcnt(0)')
    common.sw_arrive(A, 8, 1, 10)
    A.block('k_lnw')
    common.sw_addr(A, 9, p2.L_FLG + 80)
    common.sw_wait(A, 'k_lnsw', 9, 1, 12); stw(3)
    f1.dft(A, sc=SO); st(4)
    A('s_waitcnt vmcnt(0)\ns_barrier\ns_cmp_ge_u32 s16, 4\ns_cbranch_scc1 k_p2f\ns_cmp_lg_u32 s16, 0\ns_cbranch_scc1 k_ysig')
    common.ssignal2(A, 'k_ysig', 2, 64); st(5)
    p2_ids(A); p2.wd_setup(A, 's19')
    p2.wd_fill(A, range(ffill))
    A('s_cmp_lg_u32 s2, 0\ns_cbranch_scc1 k_fg1\ns_cmp_ge_u32 s16, 2\ns_cbranch_scc1 k_fg2\nk_fg1:')
    common.lds_wait(A, 'k_yissued', p2.L_FLG + 56, 16, 17, sleep=2)
    A('k_fg2:')
    p2.wd_fill(A, range(ffill, 6))
    A('s_cmp_lg_u32 s2, 0\ns_cbranch_scc1 k_fg3\ns_cmp_lt_u32 s16, 2\ns_cbranch_scc1 k_fg3')
    p2.f_setup(A, extra=True)
    A(f's_movk_i32 {s(p2.S_K)}, 320\ns_mov_b32 s60, 2\ns_branch k_p2e')
    A.block('k_fg3')
    p2.g_setup(A)
    A(f'v_mov_b32 v19, 1\ns_waitcnt vmcnt(0)\nds_write_b32 {v(p2.VFO)}, v19 offset:64'); st(6)
    A('s_cmp_lg_u32 s16, 0\ns_cbranch_scc1 k_p2g')
    common.sw_addr(A, 20, p2.L_FLG + 64)
    common.sw_wait(A, 'k_fgfull', 20, 1, 24, sleep=1)
    poll_h(A, 'k_h')
    A.block('k_p2g')
    A('s_setprio 2')
    common.lds_wait(A, 'k_hl', p2.L_FLG + 52, 20, 17); st(7)
    gst = {3: 8, 4: 9, 5: 10, 6: 11}
    if 'noh' in exp: A('s_mov_b32 s14, 0')
    slow = Asm()
    p2.g_main(A, 'k', slow, sc=SI, so=SO, stamp=lambda i: stw(gst[i]))
    fin()
    A.block('k_slow', label=False); A.extend(slow.text().split('\n'))
    A.block('k_fs')
    vm = VM()
    common.code_prefetch(A, 'k_pf2', NAME, 'k_end-' + NAME + '-4', 20); vm.issue('pf')
    f1.clear_flags(A)
    A('s_waitcnt lgkmcnt(0)\ns_barrier'); ws_srd(A)
    f1.side_ids(A)
    A('s_cmp_ge_u32 s18, 2\ns_cbranch_scc1 k_fw')
    f1.selectors(A)
    common.lds_wait(A, 'k_xl', f1.L_FL + 36, 1, 2)
    f1.cs_issue(A, vm)
    common.lds_set(A, f1.L_FL + 40, 1, 2); stw(2)
    def mid2():
        common.sw_addr(A, 9, p2.L_FLG + 80)
        common.sw_wait(A, 'k_lnsw2', 9, 1, 12)
        common.lds_wait(A, 'k_clr4', f1.L_FL + 32, 1, 2)
        f1.stats_store(A, vm, SO)
    f1.colsum_part(A, vm, 1, lambda: f1.wt_issue(A, vm), mid2)
    sig = Asm(); sig(f's_mov_b32 s28, {FL_A}\ns_waitcnt vmcnt(0)'); common.signal8(sig, WS, 's28', 128, 1, 2)
    f1.colsum_final(A, sc=SO, after=sig.text()); stw(3)
    A('s_and_b32 s19, s16, 3'); p2.f_setup(A)
    p2.sf_consts(A, VM(), 'sf_tab', '0')
    stw(4)
    f1.wt_job(A, VM(), SO); st(5)
    A('s_waitcnt vmcnt(0)\ns_barrier'); st(6)
    p2_ids(A); p2.f_setup(A); p2.srds(A)
    A(f's_mov_b32 {s(p2.S_K)}, s2\ns_mov_b32 s60, 1\ns_branch k_p2c')
    A.block('k_fw')
    vm = VM()
    A('s_cmp_lg_u32 s16, 7\ns_cbranch_scc1 k_clr2_skip')
    common.wait_cleared(A, 'k_clr2', 1, 2); common.lds_set(A, f1.L_FL + 32, 1, 2)
    A('k_clr2_skip:')
    common.lds_wait(A, 'k_csi', f1.L_FL + 40, 1, 2)
    if touch: f1.wd_touch(A)
    stw(2)
    A('s_add_u32 s36, s16, 2')
    A('s_branch k_lnw')
    A.block('k_p2f')
    p2_ids(A); p2.f_setup(A); p2.srds(A)
    A(f'''s_lshr_b32 s28, s19, 1
          s_lshl_b32 s28, s28, 8
          s_add_u32 {s(p2.S_K)}, s2, s28
          s_cmp_ge_u32 {s(p2.S_K)}, 320
          s_cbranch_scc1 k_idle
          s_mov_b32 s60, 1''')
    A.block('k_p2e')
    vm = VM()
    p2.sf_consts(A, vm, 'sf_tab', '1')
    A.block('k_p2c'); st(7)
    A('s_cmp_lg_u32 s16, 4\ns_cbranch_scc1 k_yl')
    common.poll_go(A, 'k_yp', WS, 2, 16, 17, 3)
    common.lds_set(A, p2.L_FLG + 60, 16, 17)
    A('s_branch k_yl_ok\nk_yl:')
    common.lds_wait(A, 'k_yl2', p2.L_FLG + 60, 16, 17)
    A('k_yl_ok:'); st(8)
    p2.sf_data(A, vm, SI)
    common.lds_set(A, p2.L_FLG + 56, 16, 17)
    if sfprio: A(f's_setprio {sfprio}')
    p2.sf_compute(A, vm, 'k', sc=SO, stamp=(lambda i: stw(11 + i)) if 'sf' in exp else (lambda i: None)); st(9)
    if sfprio: A('s_setprio 0')
    A('s_cmp_eq_u32 s60, 1\ns_cbranch_scc1 k_join')
    p2.u_signal(A)
    A('s_branch k_fg3')
    A.block('k_idle')
    A('s_mov_b32 s60, 0\ns_and_b32 s26, s19, 1\ns_lshl_b32 s26, s26, 1\ns_add_u32 s27, s26, 1')
    p2.wd_setup(A, 's26', 8, 23); p2.wd_setup(A, 's27', 61, 21)
    p2.wd_fill(A, range(3), 8, 23); p2.wd_fill(A, range(3), 61, 21); st(8)
    common.sw_addr(A, 20, p2.L_FLG + 64)
    common.sw_wait(A, 'k_g1done', 20, 1, 16, sleep=2); st(9)
    p2.wd_fill(A, range(3, 6), 8, 23); p2.wd_fill(A, range(3, 6), 61, 21)
    A('s_waitcnt vmcnt(0)\ns_cmp_eq_u32 s19, 2\ns_cbranch_scc1 k_fill6')
    common.lds_set(A, p2.L_FLG + 120, 16, 17)
    A('s_branch k_join\nk_fill6:')
    common.lds_wait(A, 'k_fill7', p2.L_FLG + 120, 16, 17)
    poll_h(A, 'k_h2')
    A.block('k_join')
    def mid():
        A('s_cmp_eq_u32 s60, 0\ns_cbranch_scc1 k_nosig')
        p2.u_signal(A)
        common.sw_wait(A, 'k_x4', p2.VFP, 4, 12)
        A('k_nosig:'); st(10)
    p2.tgen(A, mid)
    p2.x_loads(A, VM())
    p2.u_setup(A); 'sf' in exp or st(11)
    p2.u_wait(A, 'k_uw', utouch=utouch); 'sf' in exp or st(12); A('s_waitcnt lgkmcnt(0)')
    p2.idft(A, 'k', sc=SI); 'sf' in exp or st(13)
    p2.reduce_final(A, 'k')
    fin()
    A.block('k_done'); A('s_endpgm')
    n0 = A.blocks[0][0]
    for path in ([n0, 'k_gl', 'k_p2f', 'k_p2e', 'k_p2c', 'k_join'], [n0, 'k_gl', 'k_p2f', 'k_idle', 'k_join'], [n0, 'k_gc', 'g1_loop', 'g1_loop', 'g1_epi', 'k_p2g'],
                 [n0, 'k_f', 'k_lnw', 'f1_dft', 'f1_unit', 'f1_unit', 'f1_unit_end', 'k_fg3', 'k_p2g'], ['f1_unit_end', 'k_p2e', 'k_p2c', 'k_fg3'], [n0, 'k_fs', 'k_p2c'],
                 ['k_fw', 'k_lnw', 'f1_dft', 'f1_unit', 'f1_unit_end']):
        A.check(path)
    return khead(NAME) + A.text() + data_asm('sf_tab', sfft_tables()) + 'k_end:\n' + kdesc(NAME, 256)

def build(prof=False, **kw):
    return HEADER + '; @launch grid=(256,1,1) block=(512,1,1) lds=163840\n.amdgcn_target "amdgcn-amd-amdhsa--gfx950"\n' + kernel(prof, **kw)

if __name__ == '__main__':
    open('v5.s', 'w').write(build())
    open('v5_prof.s', 'w').write(build(prof=True))
    for nm, kw in eval(sys.argv[1] if len(sys.argv) > 1 else '{}').items():
        open(f'v5_{nm}.s', 'w').write(build(**{'prof': True, **kw}))
    import os
    if os.path.exists('/dev/kfd'): sys.exit(0)
    import rt
    for f in ('v5.s', 'v5_prof.s'):
        co = rt.build(open('dev/' + f).read(), '_chk', NAME); print(f, rt.cl.address_register_problem(co, NAME))
```
